```python
import torch

def _softmax(x, axis=-1):
    return torch.softmax(x, dim=axis)
def _gelu(x):
    return torch.nn.functional.gelu(x, approximate="tanh")
def _silu(x):
    return torch.nn.functional.silu(x)
def _sigmoid(x):
    return torch.sigmoid(x)
def _layernorm(x, axis=-1, eps=1e-5):
    m = x.mean(dim=axis, keepdim=True)
    v = x.var(dim=axis, keepdim=True, unbiased=False)
    return (x - m) / torch.sqrt(v + eps)
def _scatter_add(tgt, idx, src, axis=0):
    return tgt.clone().index_add_(axis, idx, src)
def _segment_sum(src, seg, n):
    out = torch.zeros((n,) + src.shape[1:], dtype=src.dtype)
    return out.index_add_(0, seg, src)
def _pad(x, pw):
    flat = tuple(v for pair in reversed(pw) for v in pair)
    return torch.nn.functional.pad(x, flat)

kernel_name = 'concat_heads__compressed_kv_cla__linear_kernel_hedgehog__prompt'

def setup_inputs():

    _w = (lambda a: (lambda t: t.to(torch.bfloat16) if t.is_floating_point() else t)(torch.as_tensor(a)))
    def _A_setup():
        B, H, Sq, Sk, D, M = 1, 32, 2048, 2048, 128, 576
        Dc = 4 * D
        return {
            "x": _w((lambda *s: torch.randn(*s, dtype=torch.bfloat16) * 0.8)(B, Sq, M)),
            "c_kv": _w((lambda *s: torch.randn(*s, dtype=torch.bfloat16) * 0.4)(B, Sk, Dc)),
            "w_q": _w((lambda *s: torch.randn(*s, dtype=torch.bfloat16) * 6.4)(M, H, D) * (M ** -0.5)),
            "w_uk": _w((lambda *s: torch.randn(*s, dtype=torch.bfloat16) * 6.4)(Dc, H, D) * (Dc ** -0.5)),
            "w_uv": _w((lambda *s: torch.randn(*s, dtype=torch.bfloat16) * 0.4)(Dc, H, D) * (Dc ** -0.5)),
            "w_o": _w((lambda *s: torch.randn(*s, dtype=torch.bfloat16) * 0.4)(H, D, M) * ((H * D) ** -0.5)),
        }
    _A_in = _A_setup()

    def _B_setup():
        B, S, D, H = 1, 2048, 576, 32
        Dh = D // H
        return {
            "x": _w((lambda *s: torch.randn(*s, dtype=torch.bfloat16) * 0.4)(B, S, D)),
            "wqkv": _w((lambda *s: torch.randn(*s, dtype=torch.bfloat16) * 0.4)(D, 3 * D)),
            "w_phi": _w((lambda *s: torch.randn(*s, dtype=torch.bfloat16) * 0.4)(H, Dh, Dh) * (Dh ** -0.5)),
            "wo": _w((lambda *s: torch.randn(*s, dtype=torch.bfloat16) * 0.05)(D, D)),
        }
    _B_in = _B_setup()

    return {
        "A_x": _A_in["x"],
        "A_c_kv": _A_in["c_kv"],
        "A_w_q": _A_in["w_q"],
        "A_w_uk": _A_in["w_uk"],
        "A_w_uv": _A_in["w_uv"],
        "A_w_o": _A_in["w_o"],
        "B_x": _B_in["x"],
        "B_wqkv": _B_in["wqkv"],
        "B_w_phi": _B_in["w_phi"],
        "B_wo": _B_in["wo"],
    }

def reference(A_x, A_c_kv, A_w_q, A_w_uk, A_w_uv, A_w_o, B_x, B_wqkv, B_w_phi, B_wo):
    def _A_ref(x, c_kv, w_q, w_uk, w_uv, w_o):
        B, Sq, M = x.shape[0], x.shape[1], x.shape[2]
        Sk = c_kv.shape[1]
        H, D = w_q.shape[1], w_q.shape[2]
        q = torch.einsum("bqm,mhd->bhqd", x, w_q)
        k = torch.einsum("bkc,chd->bhkd", c_kv, w_uk)
        v = torch.einsum("bkc,chd->bhkd", c_kv, w_uv)
        scores = torch.einsum("bhqd,bhkd->bhqk", q, k) * (D ** -0.5)
        off = Sk - Sq
        qi = torch.arange(Sq)[:, None]
        kj = torch.arange(Sk)[None, :]
        cmask = kj <= (qi + off)
        scores = torch.where(cmask[None, None], scores, -1e9)
        p = _softmax(scores, axis=-1)
        ctx = torch.einsum("bhqk,bhkd->bhqd", p, v)
        return torch.einsum("bhqd,hdm->bqm", ctx, w_o)

    def _B_ref(x, wqkv, w_phi, wo):
        B, S, D = x.shape
        H = 32; Dh = D // H
        qkv = (lambda x, *d: x.permute(*d))((x @ wqkv).reshape(B, S, 3, H, Dh), 2, 0, 3, 1, 4)
        q, k, v = qkv[0], qkv[1], qkv[2]
        pq = torch.einsum("bhsd,hdf->bhsf", q, w_phi)
        pk = torch.einsum("bhsd,hdf->bhsf", k, w_phi)
        phi_q = torch.concatenate([_softmax(pq, axis=-1), _softmax(-pq, axis=-1)], axis=-1)
        phi_k = torch.concatenate([_softmax(pk, axis=-1), _softmax(-pk, axis=-1)], axis=-1)
        kv = torch.einsum("bhsf,bhsd->bhfd", phi_k, v)
        z  = torch.einsum("bhsf->bhf", phi_k)
        num = torch.einsum("bhqf,bhfd->bhqd", phi_q, kv)
        den = torch.einsum("bhqf,bhf->bhq", phi_q, z)[..., None] + 1e-6
        o = num / den
        return (lambda x, *d: x.permute(*d))(o, 0, 2, 1, 3).reshape(B, S, D) @ wo

    a = _A_ref(A_x, A_c_kv, A_w_q, A_w_uk, A_w_uv, A_w_o)
    b = _B_ref(B_x, B_wqkv, B_w_phi, B_wo)
    return torch.concatenate([a, b], axis=-1)
```

```python
class Asm:
    def __init__(self):
        self.lines = []
        self.uid = 0
    def __call__(self, s, *more):
        for x in (s,) + more:
            if isinstance(x, (list, tuple)):
                for y in x: self(y)
            else:
                for ln in x.strip("\n").split("\n"):
                    ln = ln.strip()
                    if ln: self.lines.append(("" if ln.endswith(":") else "    ") + ln)
    def label(self, l): self.lines.append(l + ":")
    def newlabel(self, p="L"):
        self.uid += 1
        return f"{p}_{self.uid}"
    def text(self): return "\n".join(self.lines) + "\n"

def vr(a, n=1):
    return f"v{a}" if n == 1 else f"v[{a}:{a+n-1}]"
def sr(a, n=1):
    return f"s{a}" if n == 1 else f"s[{a}:{a+n-1}]"

class Alloc:
    def __init__(self, start, end):
        self.next = start; self.end = end; self.names = {}
    def __call__(self, n=1, align=1, name=None):
        a = (self.next + align - 1) // align * align
        assert a + n <= self.end, f"out of regs {name} {a+n} > {self.end}"
        self.next = a + n
        if name: self.names[name] = a
        return a

def mfma32(d, a, b, c=None):
    cs = vr(d, 16) if c is None else (c if isinstance(c, str) else vr(c, 16))
    return f"v_mfma_f32_32x32x16_bf16 {vr(d,16)}, {vr(a,4)}, {vr(b,4)}, {cs}"

def srd(A, s, ptr, size):
    A(f"s_mov_b32 s{s}, s{ptr}", f"s_and_b32 s{s+1}, s{ptr+1}, 0xffff", f"s_mov_b32 s{s+2}, {size}", f"s_mov_b32 s{s+3}, 0x20000")

def interleave(mf, fill):
    out = list(fill.get(-1, []))
    for i, m in enumerate(mf):
        out.append(m)
        out += fill.get(i, [])
    return out

def kernel_desc(name, vgpr, sgpr=102, accum=None):
    acc = accum if accum is not None else (min(vgpr, 256) + 3) // 4 * 4
    return f""".amdhsa_kernel {name}
  .amdhsa_next_free_vgpr {vgpr}
  .amdhsa_next_free_sgpr {sgpr}
  .amdhsa_accum_offset {acc}
  .amdhsa_group_segment_fixed_size 0
  .amdhsa_kernarg_size 104
  .amdhsa_user_sgpr_count 2
  .amdhsa_user_sgpr_kernarg_segment_ptr 1
  .amdhsa_system_sgpr_workgroup_id_x 1
.end_amdhsa_kernel
"""

STAMPS = False
WS_STAMP = 200 << 20
STAMP_V = 63
def stamp(A, i):
    if STAMPS:
        A("s_memtime s[98:99]", "s_memrealtime s[100:101]", "s_waitcnt lgkmcnt(0)",
          f"v_writelane_b32 v{STAMP_V}, s98, {2*i}", f"v_writelane_b32 v{STAMP_V}, s100, {2*i+1}")
def stamp_flush(A, ws_srd, s_w, nw, kidx=0, vtmp=1):
    if STAMPS:
        A(f"s_mul_i32 s100, s2, {nw}", f"s_add_u32 s100, s100, s{s_w}", "s_lshl_b32 s100, s100, 8", f"s_add_u32 s100, s100, {WS_STAMP + kidx*(1<<20)}",
          f"v_and_b32 v{vtmp}, 63, v0", f"v_lshlrev_b32 v{vtmp}, 2, v{vtmp}",
          f"buffer_store_dword v{STAMP_V}, v{vtmp}, s[{ws_srd}:{ws_srd+3}], s100 offen")

def mfma16(d, a, b, c=None, dpre="v", apre="v", bpre="v"):
    def r(p, x, n): return f"{p}[{x}:{x+n-1}]"
    cs = r(dpre, d, 4) if c is None else (c if isinstance(c, str) else r("v", c, 4))
    return f"v_mfma_f32_16x16x32_bf16 {r(dpre,d,4)}, {r(apre,a,4)}, {r(bpre,b,4)}, {cs}"

def spread(fill, items, start, end):
    n = len(items)
    for k, it in enumerate(items):
        s = start + (k * (end - start)) // n
        fill.setdefault(s, [])
        fill[s] += it if isinstance(it, list) else [it]

def code_prefetch(A, start_label, end_label, vtmp, vdst, nthreads, stmp=90):
    L = A.newlabel("pc")
    A(f"s_getpc_b64 s[{stmp}:{stmp+1}]")
    A.label(L)
    A(f"s_add_u32 s{stmp}, s{stmp}, {start_label}-{L}", f"s_addc_u32 s{stmp+1}, s{stmp+1}, -1" if False else f"s_addc_u32 s{stmp+1}, s{stmp+1}, ({start_label}-{L})>>32",
      f"v_lshlrev_b32 v{vtmp}, 7, v0", f"v_min_u32 v{vtmp}, {end_label}-{start_label}-4, v{vtmp}",
      f"global_load_dword v{vdst}, v{vtmp}, s[{stmp}:{stmp+1}]")
```

```python
from asmlib import *
from layout import *
import struct
def f2u(x): return struct.unpack("<I", struct.pack("<f", x))[0]
s_w, s_h, s_rb, s_p, s_rb16 = 3, 4, 5, 6, 7
D0, D1, D2, WS, X0, X1 = 8, 12, 16, 20, 24, 28
s_t, s_t2, s_t3 = 32, 33, 34
v_l, v_n, v_g, v_l16, v_t0, v_t1, v_t2, v_t3 = 1, 2, 3, 4, 5, 6, 7, 8
QSCALE = 1.4426950408889634 / (128 ** 0.5)
VSCALE_LOG2 = 45
BIAS = 100.0

def common_setup(A):
    A(f"v_lshrrev_b32 v{v_t0}, 6, v0", f"v_and_b32 v{v_l}, 63, v0", f"v_readfirstlane_b32 s{s_w}, v{v_t0}")
    A(f"v_and_b32 v{v_n}, 15, v{v_l}", f"v_lshrrev_b32 v{v_g}, 4, v{v_l}", f"v_lshlrev_b32 v{v_l16}, 4, v{v_l}")
    A(f"s_and_b32 s{s_t}, s2, 7", f"s_lshr_b32 s{s_t2}, s2, 3",
      f"s_lshl_b32 s{s_h}, s{s_t}, 2", f"s_and_b32 s{s_t3}, s{s_t2}, 3", f"s_add_u32 s{s_h}, s{s_h}, s{s_t3}",
      f"s_lshr_b32 s{s_rb}, s2, 5",
      f"s_lshl_b32 s{s_rb16}, s{s_t}, 1", f"s_and_b32 s{s_t3}, s{s_t2}, 1", f"s_add_u32 s{s_rb16}, s{s_rb16}, s{s_t3}",
      f"s_lshr_b32 s{s_p}, s2, 4")

def tr_lane_part(A, dst, sig):
    A(f"v_lshrrev_b32 v{v_t0}, 2, v{v_n}", f"v_lshl_add_u32 v{dst}, v{v_g}, 3, v{v_t0}", f"v_lshlrev_b32 v{dst}, 8, v{dst}",
      f"v_and_b32 v{sig}, 1, v{v_g}", f"v_lshl_or_b32 v{sig}, v{sig}, 2, v{v_t0}",
      f"v_and_b32 v{v_t0}, 3, v{v_n}", f"v_lshl_add_u32 v{dst}, v{v_t0}, 3, v{dst}")

def w_dma_piece(A, dst):
    A(f"s_lshl_b32 s{s_t}, s{s_w}, 1", f"s_and_b32 s{s_t}, s{s_t}, 4", f"v_or_b32 v{dst}, s{s_t}, v{v_g}", f"v_lshlrev_b32 v{dst}, 1, v{dst}",
      f"v_xor_b32 v{dst}, v{dst}, v{v_n}")
```

```python
from common import *
import asmlib

def gen_k1(A, store_flags="", standalone=True):
    name = "k1_kernel"
    A(f".globl {name}", ".p2align 8", f".type {name},@function")
    A.label(name)
    asmlib.STAMP_V = 31
    s_xoff, s_woff, s_xstr, s_wstr = 35, 36, 37, 38
    s_wslot, s_cnt, s_rslot, s_m0a, s_m0b, s_o = 39, 40, 41, 42, 43, 44
    s_part, s_kh, s_dh = 45, 46, 47
    s_e = 48
    s_gw, s_ks, s_ct = 52, 53, 54
    s_sa, s_sb, s_1k = 55, 56, 57
    A("s_cmp_ge_u32 s2, 256", "s_cbranch_scc1 k1_end")
    stamp(A, 0)
    load_ptrs(A)
    code_prefetch(A, "k1_kernel", "code_end", v_t0, 30, 512)
    V = Alloc(9, 30)
    v_d0a, v_d0b, v_d1a, v_d1b = [V() for _ in range(4)]
    v_bc = V(); v_bw = [V() for _ in range(4)]
    v_ac = V(); v_aw = [V() for _ in range(4)]
    FR = 32
    ACC = 128
    common_setup(A)
    A(f"s_lshr_b32 s{s_part}, s{s_w}, 2", f"s_and_b32 s{s_kh}, s{s_w}, 1", f"s_lshr_b32 s{s_dh}, s{s_w}, 1", f"s_and_b32 s{s_dh}, s{s_dh}, 1")
    A(f"s_lshl_b32 s{s_m0a}, s{s_w}, 11", f"s_lshl_b32 s{s_m0b}, s{s_w}, 10", f"s_add_u32 s{s_m0b}, s{s_m0b}, 16384")
    A(f"v_lshrrev_b32 v{v_t0}, 2, v{v_l}", f"s_lshl_b32 s{s_t}, s{s_w}, 5", f"v_add_u32 v{v_t0}, s{s_t}, v{v_t0}", f"v_lshlrev_b32 v{v_t0}, 10, v{v_t0}",
      f"v_sub_u32 v{v_t2}, 4, v{v_g}", f"v_xor_b32 v{v_t2}, v{v_t2}, v{v_l}", f"v_and_b32 v{v_t2}, 3, v{v_t2}", f"v_lshl_add_u32 v{v_d0a}, v{v_t2}, 4, v{v_t0}",
      f"v_add_u32 v{v_d0b}, 16384, v{v_d0a}")
    w_dma_piece(A, v_t2)
    A(f"s_lshl_b32 s{s_t}, s{s_w}, 2", f"v_add_u32 v{v_t0}, s{s_t}, v{v_g}", f"v_lshlrev_b32 v{v_t0}, 13, v{v_t0}",
      f"v_lshl_add_u32 v{v_d1a}, v{v_t2}, 4, v{v_t0}", f"v_mov_b32 v{v_d1b}, v{v_d1a}")
    A(f"s_lshl_b32 s{s_xoff}, s{s_rb}, 18", f"s_lshl_b32 s{s_woff}, s{s_h}, 8", f"s_mov_b32 s{s_xstr}, 64", f"s_mov_b32 s{s_wstr}, 0x40000")
    A(f"s_mov_b32 s{s_wslot}, 0", f"s_movk_i32 s{s_1k}, 0x400")
    A("s_waitcnt lgkmcnt(0)")
    srd(A, D0, P_C, SZ_C); srd(A, D1, P_WUK, SZ_WU); srd(A, D2, P_WUV, SZ_WU); srd(A, WS, P_WS, WS_SIZE)

    def dma_group():
        return [
            [f"s_add_u32 m0, s{s_wslot}, s{s_m0a}",
             f"s_add_u32 s{s_t}, s{s_wslot}, 32768",
             f"buffer_load_dwordx4 v{v_d0a}, s[{D0}:{D0+3}], s{s_xoff} offen lds"],
            [f"s_add_u32 m0, m0, s{s_1k}",
             f"s_cmp_eq_u32 s{s_t}, 163840",
             f"buffer_load_dwordx4 v{v_d0b}, s[{D0}:{D0+3}], s{s_xoff} offen lds",
             f"s_cselect_b32 s{s_t}, 0, s{s_t}"],
            [f"s_add_u32 m0, s{s_wslot}, s{s_m0b}",
             f"s_add_u32 s{s_xoff}, s{s_xoff}, s{s_xstr}",
             f"buffer_load_dwordx4 v{v_d1a}, s[{D1}:{D1+3}], s{s_woff} offen lds"],
            [f"s_add_u32 m0, m0, 0x2000",
             f"s_mov_b32 s{s_wslot}, s{s_t}",
             f"buffer_load_dwordx4 v{v_d1b}, s[{D2}:{D2+3}], s{s_woff} offen lds",
             f"s_add_u32 s{s_woff}, s{s_woff}, s{s_wstr}"],
        ]
    for _ in range(5): A(dma_group())
    A(f"s_lshl_b32 s{s_t}, s{s_kh}, 7", f"v_add_u32 v{v_t0}, s{s_t}, v{v_n}", f"v_lshlrev_b32 v{v_t0}, 6, v{v_t0}",
      f"v_lshrrev_b32 v{v_t1}, 2, v{v_n}", f"v_sub_u32 v{v_t1}, 4, v{v_t1}", f"v_xor_b32 v{v_t1}, v{v_t1}, v{v_g}", f"v_and_b32 v{v_t1}, 3, v{v_t1}",
      f"v_lshl_add_u32 v{v_bc}, v{v_t1}, 4, v{v_t0}")
    tr_lane_part(A, v_t3, v_t2)
    A(f"s_lshl_b32 s{s_t2}, s{s_part}, 13", f"s_add_u32 s{s_t2}, s{s_t2}, 16384", f"v_add_u32 v{v_t3}, s{s_t2}, v{v_t3}")
    for dt in range(4):
        A(f"s_lshl_b32 s{s_t}, s{s_dh}, 2", f"s_add_u32 s{s_t}, s{s_t}, {dt}", f"v_xor_b32 v{v_t0}, s{s_t}, v{v_t2}", f"v_lshl_add_u32 v{v_bw[dt]}, v{v_t0}, 5, v{v_t3}")
    for r in range(128): A(f"v_mov_b32 v{ACC+r}, 0")
    def cf(st, kt): return FR + 48 * st + 4 * kt
    def wf(st, dt): return FR + 48 * st + 32 + 4 * dt
    def kv_reads(st):
        r = []
        for dt in range(4):
            for e in range(2): r.append(f"ds_read_b64_tr_b16 {vr(wf(st,dt)+2*e,2)}, v{v_aw[dt]} offset:{e*1024}")
            for kt in (2*dt, 2*dt+1): r.append(f"ds_read_b128 {vr(cf(st,kt),4)}, v{v_ac} offset:{kt*1024}")
        return r
    def set_addr():
        return [f"v_add_u32 v{v_ac}, s{s_rslot}, v{v_bc}"] + [f"v_add_u32 v{v_aw[k]}, s{s_rslot}, v{v_bw[k]}" for k in range(4)]
    def adv_rslot():
        return [f"s_add_u32 s{s_rslot}, s{s_rslot}, 32768", f"s_cmp_eq_u32 s{s_rslot}, 163840", f"s_cselect_b32 s{s_rslot}, 0, s{s_rslot}"]
    A(f"s_mov_b32 s{s_rslot}, 0", set_addr())
    stamp(A, 1)
    A("s_waitcnt vmcnt(16)", "s_barrier")
    stamp(A, 2)
    A(kv_reads(0), adv_rslot(), set_addr())
    A(f"s_mov_b32 s{s_cnt}, 0")
    A(f"s_cmp_eq_u32 s{s_part}, 1", "s_cbranch_scc1 k1_loopV")
    def switch_to_B():
        srd(A, D0, P_BX, SZ_X); srd(A, D1, P_WQKV, SZ_WQKV); srd(A, D2, P_WQKV, SZ_WQKV)
        A(f"v_lshrrev_b32 v{v_t0}, 3, v{v_l}", f"s_lshl_b32 s{s_t}, s{s_w}, 4", f"v_add_u32 v{v_t0}, s{s_t}, v{v_t0}", f"v_mul_u32_u24 v{v_t0}, 1152, v{v_t0}",
          f"v_and_b32 v{v_t1}, 7, v{v_l}", f"v_xor_b32 v{v_t1}, v{v_t1}, v{v_g}", f"v_lshl_add_u32 v{v_d0a}, v{v_t1}, 4, v{v_t0}",
          f"v_xor_b32 v{v_t1}, 4, v{v_t1}", f"v_lshl_add_u32 v{v_d0b}, v{v_t1}, 4, v{v_t0}", f"v_add_u32 v{v_d0b}, {8*1152}, v{v_d0b}")
        w_dma_piece(A, v_t1)
        A(f"s_lshl_b32 s{s_t}, s{s_w}, 2", f"v_add_u32 v{v_t0}, s{s_t}, v{v_g}", f"v_mul_u32_u24 v{v_t0}, 3456, v{v_t0}",
          f"v_min_u32 v{v_t1}, 14, v{v_t1}",
          f"v_mul_u32_u24 v{v_t2}, 13, v{v_t1}", f"v_lshrrev_b32 v{v_t2}, 6, v{v_t2}",
          f"v_mul_u32_u24 v{v_t3}, {1152-80}, v{v_t2}",
          f"v_lshl_add_u32 v{v_t1}, v{v_t1}, 4, v{v_t3}", f"v_add_u32 v{v_d1a}, v{v_t0}, v{v_t1}", f"v_add_u32 v{v_d1b}, {32*3456}, v{v_d1a}")
        A(f"s_mul_i32 s{s_xoff}, s{s_rb16}, {128*1152}", f"s_mul_i32 s{s_woff}, s{s_p}, 72", f"s_and_b32 s{s_o}, s{s_woff}, 15", f"s_sub_u32 s{s_woff}, s{s_woff}, s{s_o}",
          f"s_mov_b32 s{s_xstr}, 128", f"s_mov_b32 s{s_wstr}, {64*3456}")
    def acc(part, kt, dt):
        return ACC + 4 * (4 * kt + dt) if part == 0 else ACC + 4 * (8 * (kt // 2) + 2 * dt + kt % 2)
    def kv_mfmas(part, st):
        return [mfma16(acc(part, kt, dt), wf(st, dt), cf(st, kt)) if part == 0 else mfma16(acc(part, kt, dt), cf(st, kt), wf(st, dt))
                for kt in range(8) for dt in range(4)]
    for part in range(2):
        L = "k1_loopV" if part else "k1_loopK"
        A.label(L)
        for half in range(2):
            if half == 1:
                A(f"s_cmp_eq_u32 s{s_cnt}, 5", f"s_cbranch_scc1 {L}_sw")
                A.label(f"{L}_mid")
                A(f"s_cmp_eq_u32 s{s_cnt}, 7", f"s_cbranch_scc1 {L}_last")
            A("s_waitcnt vmcnt(12) lgkmcnt(0)", "s_barrier")
            fill = {}
            spread(fill, kv_reads(1 - half), 0, 16)
            spread(fill, dma_group(), 16, 28)
            fill.setdefault(28, []); fill[28] += adv_rslot()
            spread(fill, set_addr(), 29, 32)
            if half == 1: fill[30].append(f"s_add_u32 s{s_cnt}, s{s_cnt}, 1")
            A(interleave(kv_mfmas(part, half), fill))
        A(f"s_branch {L}")
        A.label(f"{L}_sw")
        switch_to_B()
        A(f"s_branch {L}_mid")
        A.label(f"{L}_last")
        A("s_waitcnt lgkmcnt(0)")
        A(kv_mfmas(part, 1))
        if part == 0: A("s_branch k1_kvdone")
    A.label("k1_kvdone")
    stamp(A, 3)
    v_bx = [v_bw[0], v_bw[1]]; v_bwb = [v_bw[2], v_bw[3]]
    v_ax = [v_aw[0], v_aw[1]]; v_awb = [v_aw[2], v_aw[3]]
    for ks in range(2):
        A(f"s_lshl_b32 s{s_t}, s{s_kh}, 6", f"v_add_u32 v{v_t0}, s{s_t}, v{v_n}", f"v_lshlrev_b32 v{v_t0}, 7, v{v_t0}",
          f"v_lshrrev_b32 v{v_t1}, 1, v{v_n}", f"v_or_b32 v{v_t2}, {4*ks}, v{v_g}", f"v_xor_b32 v{v_t1}, v{v_t1}, v{v_t2}",
          f"v_lshl_add_u32 v{v_bx[ks]}, v{v_t1}, 4, v{v_t0}")
    tr_lane_part(A, v_t3, v_t2)
    A(f"v_add_u32 v{v_t3}, 16384, v{v_t3}")
    for c2 in range(2):
        A(f"s_and_b32 s{s_t}, s{s_w}, 6", f"s_add_u32 s{s_t}, s{s_t}, {c2}", f"v_xor_b32 v{v_t0}, s{s_t}, v{v_t2}", f"v_lshl_add_u32 v{v_bwb[c2]}, v{v_t0}, 5, v{v_t3}")
    A(f"s_lshl_b32 s{s_t}, s{s_h}, 6", f"s_lshl_b32 s{s_t2}, s{s_rb}, 3", f"s_add_u32 s{s_t}, s{s_t}, s{s_t2}", f"s_lshl_b32 s{s_t2}, s{s_kh}, 2", f"s_add_u32 s{s_t}, s{s_t}, s{s_t2}",
      f"s_lshl_b32 s{s_t}, s{s_t}, 13", f"s_lshl_b32 s{s_t2}, s{s_dh}, 11", f"s_lshl_b32 s{s_t2}, s{s_t2}, s{s_part}", f"s_add_u32 s{s_t}, s{s_t}, s{s_t2}",
      f"s_lshl_b32 s{s_t2}, s{s_part}, 24", f"s_add_u32 s{s_sa}, s{s_t}, s{s_t2}", f"s_lshr_b32 s{s_t2}, 4096, s{s_part}", f"s_add_u32 s{s_sb}, s{s_sa}, s{s_t2}")
    A(f"s_mov_b32 s{s_e}, {f2u(QSCALE):#x}", f"s_cmp_eq_u32 s{s_part}, 1", f"s_cselect_b32 s{s_e}, {f2u(2.0**VSCALE_LOG2):#x}, s{s_e}", f"s_mov_b32 s{s_e+1}, s{s_e}")
    PK = 192
    for f in range(15, -1, -1):
        src = ACC + 8 * f
        for q in range(4): A(f"v_pk_mul_f32 {vr(src+2*q,2)}, {vr(src+2*q,2)}, s[{s_e}:{s_e+1}]")
        for q in range(3, -1, -1): A(f"v_cvt_pk_bf16_f32 v{PK+4*f+q}, v{src+2*q}, v{src+2*q+1}")
    def kv_store(f):
        so = s_sa if f % 4 < 2 else s_sb
        r = [f"buffer_store_dwordx4 {vr(PK+4*f,4)}, v{v_l16}, s[{WS}:{WS+3}], s{so} offen offset:{(f&1)*1024} {store_flags}".rstrip()]
        if f % 4 == 1: r.append(f"s_add_u32 s{s_sa}, s{s_sa}, 8192")
        if f % 4 == 3: r.append(f"s_add_u32 s{s_sb}, s{s_sb}, 8192")
        return r
    srd(A, X0, P_WPHI, SZ_WPHI)
    v_m, v_hf = 80, 81
    tmpa = 84
    A(f"v_and_b32 v{v_m}, 31, v{v_l}", f"v_lshrrev_b32 v{v_hf}, 5, v{v_l}")
    A(f"s_cmp_ge_u32 s{s_w}, 3", f"s_cselect_b32 s{s_t}, 1, 0", f"s_mul_i32 s{s_t2}, s{s_t}, 3", f"s_sub_u32 s{s_t2}, s{s_w}, s{s_t2}")
    A(f"v_bfe_u32 v{v_t0}, v{v_m}, 2, 1",
      f"v_lshrrev_b32 v{v_t1}, 3, v{v_m}", f"v_and_b32 v{v_t2}, 3, v{v_m}", f"v_lshl_add_u32 v{v_t1}, v{v_t1}, 2, v{v_t2}",
      f"s_lshl_b32 s{s_t}, s{s_t}, 4", f"v_add_u32 v{v_t1}, s{s_t}, v{v_t1}",
      f"s_lshl_b32 s{s_t2}, s{s_t2}, 4", f"s_lshr_b32 s{s_t3}, s{s_o}, 1", f"s_sub_u32 s{s_t2}, s{s_t2}, s{s_t3}",
      f"v_lshlrev_b32 v{v_t2}, 3, v{v_hf}", f"v_add_u32 v{v_t2}, s{s_t2}, v{v_t2}", f"v_mul_u32_u24 v{v_t3}, 18, v{v_t0}", f"v_sub_u32 v{v_t2}, v{v_t2}, v{v_t3}")
    A(f"v_cmp_gt_u32 vcc, 18, v{v_t1}", f"v_mov_b32 v{v_t3}, 1000", "s_nop 0", f"v_cndmask_b32 v{v_t2}, v{v_t3}, v{v_t2}, vcc")
    A(f"s_lshl_b32 s{s_t}, s{s_p}, 1", f"v_add_u32 v{v_t0}, s{s_t}, v{v_t0}", f"v_mul_u32_u24 v{v_t0}, 648, v{v_t0}", f"v_lshl_add_u32 v{v_t0}, v{v_t1}, 1, v{v_t0}")
    A(f"v_mov_b32 v{v_t3}, 0x7fffff00")
    for e in range(8):
        A(f"v_add_u32 v{v_t1}, {e}, v{v_t2}", f"v_cmp_gt_u32 vcc, 18, v{v_t1}", f"v_mad_u32_u24 v{tmpa+e}, v{v_t1}, 36, v{v_t0}", "s_nop 0",
          f"v_cndmask_b32 v{tmpa+e}, v{v_t3}, v{tmpa+e}, vcc")
    gathers = [f"buffer_load_ushort v{tmpa+e}, v{tmpa+e}, s[{X0}:{X0+3}], 0 offen" for e in range(8)]
    BACC = ACC
    for r in range(32): A(f"v_mov_b32 v{BACC+r}, 0")
    BF = FR
    def bx(st, rt): return BF + 24 * st + 4 * rt
    def bw(st, c2): return BF + 24 * st + 16 + 4 * c2
    def b_reads(ks):
        r = []
        for c2 in range(2):
            for e in range(2): r.append(f"ds_read_b64_tr_b16 {vr(bw(ks,c2)+2*e,2)}, v{v_awb[c2]} offset:{(32*ks+4*e)*256}")
            for rt in (2*c2, 2*c2+1): r.append(f"ds_read_b128 {vr(bx(ks,rt),4)}, v{v_ax[ks]} offset:{rt*2048}")
        return r
    def b_set_addr():
        return [f"v_add_u32 v{v_ax[k]}, s{s_rslot}, v{v_bx[k]}" for k in range(2)] + [f"v_add_u32 v{v_awb[k]}, s{s_rslot}, v{v_bwb[k]}" for k in range(2)]
    def b_mfmas(st): return [mfma16(BACC + 4 * (2 * rt + c2), bw(st, c2), bx(st, rt)) for rt in range(4) for c2 in range(2)]
    A(b_set_addr())
    stamp(A, 4)
    log = []
    for sl in range(13, 20): log += [("slab", sl)] * 4
    def vm_for(sl):
        last = max(k for k, x in enumerate(log) if x == ("slab", sl))
        return min(len(log) - 1 - last, 63)
    st_next = [0]
    for t in range(16, 25):
        A(f"s_waitcnt vmcnt({vm_for(t)}) lgkmcnt(0)", "s_barrier")
        extra = []
        if t + 4 <= 24:
            extra += dma_group(); log += [("slab", t + 4)] * 4
        nst = 2 if t < 24 else 0
        for _ in range(nst):
            extra.append(kv_store(st_next[0])); st_next[0] += 1; log.append(("st", 0))
        if t == 21:
            extra += gathers; log += [("g", 0)] * 8
        fill = {}
        spread(fill, b_reads(0), 0, 4)
        spread(fill, extra[: (len(extra) + 1) // 2], 4, 8) if extra else None
        if t == 16: A(sum([fill.get(k, []) for k in range(8)], []))
        else: A(interleave(b_mfmas(1), fill))
        A("s_waitcnt lgkmcnt(0)")
        fill = {}
        spread(fill, b_reads(1), 0, 4)
        if extra[(len(extra) + 1) // 2:]: spread(fill, extra[(len(extra) + 1) // 2:], 4, 7)
        fill.setdefault(6, []); fill[6] += adv_rslot()
        fill.setdefault(7, []); fill[7] += b_set_addr()
        A(interleave(b_mfmas(0), fill))
    A("s_waitcnt lgkmcnt(0)")
    A(b_mfmas(1))
    stamp(A, 5)
    SJ = 160
    srd(A, X0, P_WO, SZ_WO); srd(A, X1, P_WOB, SZ_WOB)
    A(f"v_mul_u32_u24 v{v_t0}, {4*1152}, v{v_g}", f"v_lshl_add_u32 v{v_t0}, v{v_n}, 1, v{v_t0}")
    A(f"s_lshl_b32 s{s_t}, s{s_h}, 7", f"s_lshr_b32 s{s_t2}, s{s_rb}, 1", f"s_lshl_b32 s{s_t2}, s{s_t2}, 5", f"s_add_u32 s{s_t}, s{s_t}, s{s_t2}", f"s_mul_i32 s{s_t}, s{s_t}, 1152",
      f"s_and_b32 s{s_t2}, s{s_rb}, 1", f"s_mul_i32 s{s_ct}, s{s_t2}, 18", f"s_add_u32 s{s_ct}, s{s_ct}, s{s_w}",
      f"s_lshl_b32 s{s_t2}, s{s_ct}, 5", f"s_add_u32 s{s_t}, s{s_t}, s{s_t2}")
    for c in range(3):
        if c == 2: A(f"s_cmp_lt_u32 s{s_w}, 2", f"s_cselect_b32 s{s_t3}, 512, 0", f"s_add_u32 s{s_e}, s{s_t}, s{s_t3}")
        else: A(f"s_add_u32 s{s_e}, s{s_t}, {c*256}")
        A(f"s_add_u32 s{s_e+1}, s{s_e}, {16*1152}")
        for e in range(8):
            A(f"buffer_load_ushort v{SJ+8*c+e}, v{v_t0}, s[{X0}:{X0+3}], s{s_e+e//4} offen offset:{(e%4)*1152}")
    s_ct2 = 58
    A(f"s_lshl_b32 s{s_gw}, s2, 3", f"s_add_u32 s{s_gw}, s{s_gw}, s{s_w}", f"s_min_u32 s{s_t}, s{s_gw}, 647",
      f"s_mul_i32 s{s_ks}, s{s_t}, 3641", f"s_lshr_b32 s{s_ks}, s{s_ks}, 16", f"s_mul_i32 s{s_t2}, s{s_ks}, 18", f"s_sub_u32 s{s_ct2}, s{s_t}, s{s_t2}")
    A(f"v_mul_u32_u24 v{v_t1}, {18*1152}, v{v_hf}", f"v_lshl_add_u32 v{v_t1}, v{v_m}, 1, v{v_t1}")
    for e in range(8):
        A(f"s_lshl_b32 s{s_t}, s{s_ks}, 3", f"s_add_u32 s{s_t}, s{s_t}, {e}", f"s_mul_i32 s{s_t2}, s{s_t}, 3641", f"s_lshr_b32 s{s_t2}, s{s_t2}, 16",
          f"s_mul_i32 s{s_t2}, s{s_t2}, 18", f"s_add_u32 s{s_t}, s{s_t}, s{s_t2}", f"s_mul_i32 s{s_t}, s{s_t}, 1152", f"s_lshl_b32 s{s_t2}, s{s_ct2}, 6", f"s_add_u32 s{s_t}, s{s_t}, s{s_t2}",
          f"buffer_load_ushort v{SJ+24+e}, v{v_t1}, s[{X1}:{X1+3}], s{s_t} offen")
    QKV, WIMG, PHIK = 0, 34816, 40960
    A(f"s_lshl_b32 s{s_t}, s{s_kh}, 6", f"v_add_u32 v{v_t0}, s{s_t}, v{v_n}", f"v_mul_u32_u24 v{v_t0}, 272, v{v_t0}", f"v_lshl_add_u32 v{v_t0}, v{v_g}, 3, v{v_t0}",
      f"s_lshr_b32 s{s_t}, s{s_w}, 1", f"s_lshl_b32 s{s_t2}, s{s_t}, 6", f"v_add_u32 v{v_t0}, s{s_t2}, v{v_t0}")
    for rt in range(4):
        for c2 in range(2):
            d = BACC + 4 * (2 * rt + c2); tmp = FR + 2 * (2 * rt + c2)
            A(f"v_cvt_pk_bf16_f32 v{tmp}, v{d}, v{d+1}", f"v_cvt_pk_bf16_f32 v{tmp+1}, v{d+2}, v{d+3}",
              f"ds_write_b64 v{v_t0}, {vr(tmp,2)} offset:{QKV + rt*16*272 + c2*32}")
    A(f"s_cmp_lt_u32 s{s_t}, 2", "s_cbranch_scc1 k1_noones")
    A(f"s_cmp_eq_u32 s{s_t}, 2", f"s_cselect_b32 s{s_t2}, 0, {37*2}", f"s_add_u32 s{s_t2}, s{s_t2}, s{s_o}", f"s_add_u32 s{s_t2}, s{s_t2}, {79*2}",
      f"s_lshl_b32 s{s_t3}, s{s_kh}, 6", f"v_add_u32 v{v_t1}, s{s_t3}, v{v_l}", f"v_mul_u32_u24 v{v_t1}, 272, v{v_t1}", f"v_add_u32 v{v_t1}, s{s_t2}, v{v_t1}",
      f"v_mov_b32 v{v_t2}, 0x3f80", f"ds_write_b16 v{v_t1}, v{v_t2} offset:{QKV}")
    A.label("k1_noones")
    A(f"s_cmp_ge_u32 s{s_w}, 6", "s_cbranch_scc1 k1_nowimg")
    A("s_waitcnt vmcnt(32)")
    v_wph = 92
    for q in range(4): A(f"v_lshl_or_b32 v{v_wph+q}, v{tmpa+2*q+1}, 16, v{tmpa+2*q}")
    A(f"s_lshl_b32 s{s_t}, s{s_w}, 10", f"v_add_u32 v{v_t1}, s{s_t}, v{v_l16}", f"ds_write_b128 v{v_t1}, {vr(v_wph,4)} offset:{WIMG}")
    A.label("k1_nowimg")
    A("s_waitcnt lgkmcnt(0)", "s_barrier")
    stamp(A, 6)
    AF, QF, D2a, D2b = 32, 56, 192, 208
    A(f"s_and_b32 s{s_t}, s{s_w}, 3", f"s_lshl_b32 s{s_t}, s{s_t}, 5", f"v_add_u32 v{v_t0}, s{s_t}, v{v_m}", f"v_mul_u32_u24 v{v_t1}, 272, v{v_t0}",
      f"v_lshl_add_u32 v{v_t1}, v{v_hf}, 4, v{v_t1}", f"s_mul_i32 s{s_t2}, s{s_part}, 80", f"v_add_u32 v{v_t1}, s{s_t2}, v{v_t1}")
    for ks in range(3): A(f"ds_read_b128 {vr(QF+4*ks,4)}, v{v_t1} offset:{QKV + ks*32}")
    for f in range(6): A(f"ds_read_b128 {vr(AF+4*f,4)}, v{v_l16} offset:{WIMG + f*1024}")
    A("s_waitcnt lgkmcnt(0)")
    for mt in range(2):
        for ks in range(3):
            A(mfma32(D2a + 16 * mt, AF + 4 * (3 * mt + ks), QF + 4 * ks, "0" if ks == 0 else None))
    A("s_nop 15")
    pv = [D2a + j for j in range(16)] + [D2b, D2b + 1]
    v_mx, v_mn, v_sp, v_sn = 32, 33, 34, 35
    EP, EN, PH = 96, 114, 40
    A(f"s_mov_b32 s{s_t}, 0x3fb8aa3b")
    for j in range(18): A(f"v_mul_f32 v{pv[j]}, s{s_t}, v{pv[j]}")
    A(f"v_max3_f32 v{v_mx}, v{pv[0]}, v{pv[1]}, v{pv[2]}", f"v_min3_f32 v{v_mn}, v{pv[0]}, v{pv[1]}, v{pv[2]}")
    for j in range(3, 17, 2):
        A(f"v_max3_f32 v{v_mx}, v{v_mx}, v{pv[j]}, v{pv[j+1]}", f"v_min3_f32 v{v_mn}, v{v_mn}, v{pv[j]}, v{pv[j+1]}")
    A(f"v_max_f32 v{v_mx}, v{v_mx}, v{pv[17]}", f"v_min_f32 v{v_mn}, v{v_mn}, v{pv[17]}")
    for j in range(18):
        A(f"v_sub_f32 v{EP+j}, v{pv[j]}, v{v_mx}", f"v_sub_f32 v{EN+j}, v{v_mn}, v{pv[j]}")
    for j in range(18):
        A(f"v_exp_f32 v{EP+j}, v{EP+j}", f"v_exp_f32 v{EN+j}, v{EN+j}")
    A(f"v_add_f32 v{v_sp}, v{EP}, v{EP+1}", f"v_add_f32 v{v_sn}, v{EN}, v{EN+1}")
    for j in range(2, 18):
        A(f"v_add_f32 v{v_sp}, v{v_sp}, v{EP+j}", f"v_add_f32 v{v_sn}, v{v_sn}, v{EN+j}")
    A(f"v_rcp_f32 v{v_sp}, v{v_sp}", f"v_rcp_f32 v{v_sn}, v{v_sn}", "s_nop 0")
    for j in range(18):
        A(f"v_mul_f32 v{EP+j}, v{v_sp}, v{EP+j}", f"v_mul_f32 v{EN+j}, v{v_sn}, v{EN+j}")
    for t in range(18):
        A(f"v_cvt_pk_bf16_f32 v{PH+t}, v{EP+2*t}, v{EP+2*t+1}")
    A(f"v_mov_b32 v{PH+18}, 0", f"v_mov_b32 v{PH+19}, 0")
    A(f"s_cmp_eq_u32 s{s_part}, 1", "s_cbranch_scc1 k1_phik")
    A(f"s_lshl_b32 s{s_t}, s{s_rb16}, 2", f"s_add_u32 s{s_t}, s{s_t}, s{s_w}", f"s_lshl_b32 s{s_t}, s{s_t}, 4", f"s_add_u32 s{s_t}, s{s_t}, s{s_p}",
      f"s_mul_i32 s{s_t}, s{s_t}, 5120", f"s_add_u32 s{s_t}, s{s_t}, {WS_PHIQ}", f"s_add_u32 s{s_t2}, s{s_t}, 4096")
    for t in range(4): A(f"buffer_store_dwordx4 {vr(PH+4*t,4)}, v{v_l16}, s[{WS}:{WS+3}], s{s_t} offen offset:{t*1024}")
    A(f"buffer_store_dwordx4 {vr(PH+16,4)}, v{v_l16}, s[{WS}:{WS+3}], s{s_t2} offen")
    A("s_branch k1_s3")
    A.label("k1_phik")
    A(f"v_mul_u32_u24 v{v_t1}, 160, v{v_t0}", f"v_mul_u32_u24 v{v_t2}, 80, v{v_hf}", f"v_add_u32 v{v_t1}, v{v_t1}, v{v_t2}")
    for t in range(5): A(f"ds_write_b128 v{v_t1}, {vr(PH+4*t,4)} offset:{PHIK + 16*t}")
    A.label("k1_s3")
    A("s_waitcnt lgkmcnt(0)", "s_barrier")
    A(f"s_cmp_eq_u32 s{s_part}, 1", "s_cbranch_scc1 k1_side")
    A(f"v_lshrrev_b32 v{v_t0}, 2, v{v_n}", f"v_lshl_add_u32 v{v_t0}, v{v_hf}, 3, v{v_t0}",
      f"v_and_b32 v{v_t1}, 1, v{v_g}", f"v_lshlrev_b32 v{v_t1}, 5, v{v_t1}", f"v_and_b32 v{v_t2}, 3, v{v_n}", f"v_lshl_add_u32 v{v_t1}, v{v_t2}, 3, v{v_t1}")
    A(f"v_mul_u32_u24 v{v_t2}, 160, v{v_t0}", f"v_add_u32 v{v_t2}, v{v_t2}, v{v_t1}", f"s_mul_i32 s{s_t}, s{s_kh}, 80", f"s_lshl_b32 s{s_t2}, s{s_dh}, 6", f"s_add_u32 s{s_t}, s{s_t}, s{s_t2}",
      f"v_add_u32 v{v_t2}, s{s_t}, v{v_t2}",
      f"v_mul_u32_u24 v{v_t3}, 272, v{v_t0}", f"v_add_u32 v{v_t3}, v{v_t3}, v{v_t1}", f"s_mul_i32 s{s_t}, s{s_kh}, 40", f"s_add_u32 s{s_t}, s{s_t}, {76*2}", f"s_add_u32 s{s_t}, s{s_t}, s{s_o}",
      f"v_add_u32 v{v_t3}, s{s_t}, v{v_t3}")
    A3, B3, D3 = 96, 128, 192
    for ks in range(8):
        for e in range(2):
            A(f"ds_read_b64_tr_b16 {vr(A3+4*ks+2*e,2)}, v{v_t2} offset:{PHIK + (16*ks+4*e)*160}")
            A(f"ds_read_b64_tr_b16 {vr(B3+4*ks+2*e,2)}, v{v_t3} offset:{QKV + (16*ks+4*e)*272}")
    A("s_waitcnt lgkmcnt(0)")
    for ks in range(8): A(mfma32(D3, A3 + 4 * ks, B3 + 4 * ks, "0" if ks == 0 else None))
    A(f"s_lshl_b32 s{s_t}, s{s_kh}, 1", f"s_sub_u32 s{s_t}, 4, s{s_t}", f"v_subrev_u32 v{v_t0}, s{s_t}, v{v_m}",
      f"v_cmp_eq_u32 vcc, -1, v{v_t0}", f"v_mov_b32 v{v_t1}, 18", "s_nop 0", f"v_cndmask_b32 v{v_t0}, v{v_t0}, v{v_t1}, vcc",
      f"v_mul_u32_u24 v{v_t1}, 320, v{v_hf}", f"v_lshl_add_u32 v{v_t0}, v{v_t0}, 2, v{v_t1}")
    A(f"s_lshl_b32 s{s_t}, s{s_rb16}, 5", f"s_lshl_b32 s{s_t2}, s{s_p}, 1", f"s_add_u32 s{s_t}, s{s_t}, s{s_t2}", f"s_add_u32 s{s_t}, s{s_t}, s{s_kh}",
      f"s_mul_i32 s{s_t}, s{s_t}, 36", f"s_lshl_b32 s{s_t2}, s{s_dh}, 5", f"s_add_u32 s{s_t}, s{s_t}, s{s_t2}", f"s_mul_i32 s{s_t}, s{s_t}, 80", f"s_add_u32 s{s_t}, s{s_t}, {WS_KVP}")
    m0_ = sum(1 << b for b in range(3, 22))
    A(f"s_lshr_b32 s{s_e}, {m0_}, s{s_kh}", f"s_cmp_eq_u32 s{s_dh}, 0", f"s_cselect_b32 s{s_e+1}, s{s_e}, 0")
    A("s_nop 7")
    A(f"s_mov_b64 exec, s[{s_e}:{s_e+1}]")
    for j in range(4): A(f"buffer_store_dword v{D3+j}, v{v_t0}, s[{WS}:{WS+3}], s{s_t} offen offset:{j*80}")
    A(f"s_cmp_eq_u32 s{s_dh}, 1", "s_cbranch_scc1 k1_s3done")
    for j in range(4, 16): A(f"buffer_store_dword v{D3+j}, v{v_t0}, s[{WS}:{WS+3}], s{s_t} offen offset:{(8*(j//4)+j%4)*80}")
    A.label("k1_s3done")
    A("s_mov_b64 exec, -1")
    A.label("k1_side")
    stamp(A, 7)
    A("s_waitcnt vmcnt(0)")
    for q in range(16): A(f"v_lshl_or_b32 v{SJ+q}, v{SJ+2*q+1}, 16, v{SJ+2*q}")
    for c in range(3):
        if c == 2: A(f"s_cmp_ge_u32 s{s_w}, 2", "s_cbranch_scc1 k1_wob")
        A(f"s_add_u32 s{s_t}, s{s_ct}, {8*c}", f"s_mul_i32 s{s_t2}, s{s_t}, 43", f"s_lshr_b32 s{s_t2}, s{s_t2}, 8", f"s_mul_i32 s{s_t3}, s{s_t2}, 6", f"s_sub_u32 s{s_t}, s{s_t}, s{s_t3}",
          f"s_lshl_b32 s{s_t2}, s{s_t2}, 5", f"s_add_u32 s{s_t2}, s{s_t2}, s{s_h}", f"s_lshl_b32 s{s_t2}, s{s_t2}, 2", f"s_lshr_b32 s{s_t3}, s{s_rb}, 1", f"s_add_u32 s{s_t2}, s{s_t2}, s{s_t3}",
          f"s_mul_i32 s{s_t2}, s{s_t2}, 6", f"s_add_u32 s{s_t2}, s{s_t2}, s{s_t}", f"s_lshl_b32 s{s_t2}, s{s_t2}, 10", f"s_add_u32 s{s_t2}, s{s_t2}, {WS_WO}",
          f"buffer_store_dwordx4 {vr(SJ+4*c,4)}, v{v_l16}, s[{WS}:{WS+3}], s{s_t2} offen")
    A.label("k1_wob")
    stamp(A, 8)
    stamp_flush(A, WS, s_w, 8, 0, vtmp=v_t0)
    A(f"s_cmp_ge_u32 s{s_gw}, 648", "s_cbranch_scc1 k1_end")
    A(f"s_lshl_b32 s{s_t}, s{s_gw}, 10", f"s_add_u32 s{s_t}, s{s_t}, {WS_WOB}", f"buffer_store_dwordx4 {vr(SJ+12,4)}, v{v_l16}, s[{WS}:{WS+3}], s{s_t} offen")
    A.label("k1_end")
    A("s_endpgm")
    return name
```

```python
from common import *
import asmlib

T_LOG2 = 120.0

def gen_k2(A, tlog2=T_LOG2, BAR=1, prio=0):
    name = "k2_kernel"
    A(f".globl {name}", ".p2align 8", f".type {name},@function")
    A.label(name)
    asmlib.STAMP_V = 23
    s_i = s_rb
    s_grp, s_r = 35, 36
    s_xoff, s_xoff2, s_woff, s_woff2 = 37, 38, 39, 40
    s_wslot, s_rslot, s_cnt, s_m0x, s_m0w, s_1k = 41, 42, 43, 44, 45, 46
    s_u, s_spec, s_rel, s_it, s_ret, s_kB, s_kA, s_A0, s_thr = 47, 48, 50, 51, 52, 54, 55, 56, 57
    s_row0, s_rowL, s_wl, s_dA, s_U1m, s_U1 = 58, 59, 60, 61, 37, 38
    s_U1m, s_U1 = 64, 65
    KB, VB, KA, VA = D2, X0, X1, 68
    s_c = 90
    A("s_cmp_ge_u32 s2, 256", "s_cbranch_scc1 k2_end")
    stamp(A, 0)
    load_ptrs(A)
    code_prefetch(A, "k2_kernel", "code_end", v_t0, 22, 512)
    common_setup(A)
    v_xa, v_xb, v_wv, v_kb, v_vb, v_dma, v_dl0, v_ninf, v_dl = 9, 10, 11, 12, 13, 14, 15, 16, 17
    NM = 24; KF = 32; VF = 64; Q = 96; O = 128; S = 192; P = 224; E = 240
    L_, US, v_x0, v_x1, v_x2, v_x3 = 248, 250, 252, 253, 254, 255
    A(f"s_lshr_b32 s{s_grp}, s{s_w}, 2", f"s_and_b32 s{s_r}, s{s_w}, 3")
    A(f"s_sub_u32 s{s_t}, 15, s{s_i}", f"s_lshl_b32 s{s_t}, s{s_t}, 7", f"s_lshl_b32 s{s_t2}, s{s_r}, 5", f"s_add_u32 s{s_rowL}, s{s_t}, s{s_t2}",
      f"s_lshl_b32 s{s_t}, s{s_i}, 7", f"s_add_u32 s{s_t}, s{s_t}, s{s_t2}", f"s_cmp_eq_u32 s{s_grp}, 0", f"s_cselect_b32 s{s_row0}, s{s_t}, s{s_rowL}")
    v_sj = 18
    SJ = 212
    A(f"s_min_u32 s{s_t}, s2, 159", f"s_mul_i32 s{s_t2}, s{s_t}, 205", f"s_lshr_b32 s{s_t2}, s{s_t2}, 11",
      f"s_mul_i32 s{s_t3}, s{s_t2}, 10", f"s_sub_u32 s{s_t}, s{s_t}, s{s_t3}",
      f"s_cmp_ge_u32 s{s_t}, 5", f"s_cselect_b32 s{s_t3}, 16, 0", f"s_cselect_b32 s{s_cnt}, 5, 0", f"s_sub_u32 s{s_t}, s{s_t}, s{s_cnt}",
      f"s_lshl_b32 s{s_t}, s{s_t}, 3", f"s_add_u32 s{s_t}, s{s_t}, s{s_w}")
    A(f"v_and_b32 v{v_t0}, 31, v{v_l}", f"v_lshrrev_b32 v{v_t1}, 5, v{v_l}",
      f"v_lshrrev_b32 v{v_t2}, 3, v{v_t0}", f"v_and_b32 v{v_t3}, 3, v{v_t0}", f"v_lshl_add_u32 v{v_t2}, v{v_t2}, 2, v{v_t3}", f"v_add_u32 v{v_t2}, s{s_t3}, v{v_t2}",
      f"v_bfe_u32 v{v_t0}, v{v_t0}, 2, 1", f"v_xor_b32 v{v_t0}, v{v_t0}, v{v_t1}", f"v_lshl_add_u32 v{v_t0}, v{v_t0}, 6, v{v_t2}",
      f"s_lshl_b32 s{s_t2}, s{s_t2}, 1", f"v_add_u32 v{v_t1}, s{s_t2}, v{v_t1}", f"v_mul_u32_u24 v{v_t1}, {36*80}, v{v_t1}", f"v_lshl_add_u32 v{v_t1}, v{v_t2}, 2, v{v_t1}",
      f"s_mul_i32 s{s_t2}, s{s_t}, 80", f"v_add_u32 v{v_t1}, s{s_t2}, v{v_t1}",
      f"s_cmp_lt_u32 s{s_t}, 36", f"s_cselect_b32 s{s_t}, 19, 0", f"v_cmp_gt_u32 vcc, s{s_t}, v{v_t0}", f"v_mov_b32 v{v_t2}, 0x7fffff00", "s_nop 0",
      f"v_cndmask_b32 v{v_sj}, v{v_t2}, v{v_t1}, vcc")
    A(f"v_lshrrev_b32 v{v_t0}, 3, v{v_l}", f"v_mul_u32_u24 v{v_t0}, 1152, v{v_t0}", f"v_and_b32 v{v_t1}, 7, v{v_l}", f"v_xor_b32 v{v_t1}, v{v_t1}, v{v_g}",
      f"v_lshl_add_u32 v{v_xa}, v{v_t1}, 4, v{v_t0}", f"v_xor_b32 v{v_t1}, 4, v{v_t1}", f"v_lshl_add_u32 v{v_xb}, v{v_t1}, 4, v{v_t0}", f"v_add_u32 v{v_xb}, {8*1152}, v{v_xb}")
    w_dma_piece(A, v_t2)
    A(f"s_lshl_b32 s{s_t}, s{s_w}, 2", f"v_add_u32 v{v_t0}, s{s_t}, v{v_g}", f"v_lshlrev_b32 v{v_t0}, 13, v{v_t0}", f"v_lshl_add_u32 v{v_wv}, v{v_t2}, 4, v{v_t0}")
    A(f"s_mul_i32 s{s_xoff}, s{s_row0}, 1152", f"s_add_u32 s{s_xoff2}, s{s_xoff}, {16*1152}", f"s_lshl_b32 s{s_woff}, s{s_h}, 8", f"s_add_u32 s{s_woff2}, s{s_woff}, 0x40000",
      f"s_lshl_b32 s{s_m0x}, s{s_w}, 12", f"s_lshl_b32 s{s_wl}, s{s_w}, 10", f"s_add_u32 s{s_m0w}, s{s_wl}, 32768", f"s_movk_i32 s{s_1k}, 0x400", f"s_mov_b32 s{s_wslot}, 0")
    A("s_waitcnt lgkmcnt(0)")
    srd(A, D0, P_AX, SZ_X); srd(A, D1, P_WQ, SZ_WQ); srd(A, WS, P_WS, WS_SIZE)
    def q_dma():
        return [
            [f"s_add_u32 m0, s{s_wslot}, s{s_m0x}", f"s_add_u32 s{s_t}, s{s_wslot}, 49152", f"buffer_load_dwordx4 v{v_xa}, s[{D0}:{D0+3}], s{s_xoff} offen lds"],
            [f"s_add_u32 m0, m0, s{s_1k}", f"s_cmp_eq_u32 s{s_t}, 147456", f"buffer_load_dwordx4 v{v_xb}, s[{D0}:{D0+3}], s{s_xoff} offen lds", f"s_cselect_b32 s{s_t}, 0, s{s_t}"],
            [f"s_add_u32 m0, m0, s{s_1k}", f"s_add_u32 s{s_xoff}, s{s_xoff}, 128", f"buffer_load_dwordx4 v{v_xa}, s[{D0}:{D0+3}], s{s_xoff2} offen lds"],
            [f"s_add_u32 m0, m0, s{s_1k}", "s_nop 0", f"buffer_load_dwordx4 v{v_xb}, s[{D0}:{D0+3}], s{s_xoff2} offen lds"],
            [f"s_add_u32 m0, s{s_wslot}, s{s_m0w}", f"s_add_u32 s{s_xoff2}, s{s_xoff2}, 128", f"buffer_load_dwordx4 v{v_wv}, s[{D1}:{D1+3}], s{s_woff} offen lds", f"s_add_u32 s{s_woff}, s{s_woff}, 0x80000"],
            [f"s_add_u32 m0, m0, 0x2000", f"s_mov_b32 s{s_wslot}, s{s_t}", f"buffer_load_dwordx4 v{v_wv}, s[{D1}:{D1+3}], s{s_woff2} offen lds", f"s_add_u32 s{s_woff2}, s{s_woff2}, 0x80000"],
        ]
    A(q_dma())
    A(f"s_mov_b32 s{s_t2}, {WS_KVP}")
    for rb in range(16):
        A(f"buffer_load_dword v{SJ+rb}, v{v_sj}, s[{WS}:{WS+3}], s{s_t2} offen")
        if rb < 15: A(f"s_add_u32 s{s_t2}, s{s_t2}, {32*36*80}")
    A(q_dma(), q_dma())
    QB = 192
    v_bx = [QB, QB + 1]; v_bw = [QB + 2 + d for d in range(8)]
    v_ax = [QB + 10, QB + 11]; v_aw = [QB + 12 + d for d in range(8)]
    for ks in range(2):
        A(f"s_lshl_b32 s{s_t}, s{s_w}, 5", f"v_add_u32 v{v_t0}, s{s_t}, v{v_n}", f"v_lshlrev_b32 v{v_t0}, 7, v{v_t0}",
          f"v_lshrrev_b32 v{v_t1}, 1, v{v_n}", f"v_or_b32 v{v_t2}, {4*ks}, v{v_g}", f"v_xor_b32 v{v_t1}, v{v_t1}, v{v_t2}", f"v_lshl_add_u32 v{v_bx[ks]}, v{v_t1}, 4, v{v_t0}")
    tr_lane_part(A, v_t3, v_t2)
    A(f"v_add_u32 v{v_t3}, 32768, v{v_t3}")
    for dt in range(8):
        A(f"v_xor_b32 v{v_t0}, {dt}, v{v_t2}", f"v_lshl_add_u32 v{v_bw[dt]}, v{v_t0}, 5, v{v_t3}")
    QACC = O
    for r in range(64): A(f"v_mov_b32 v{QACC+r}, 0")
    def qx(st, qt): return 32 + 40 * st + 4 * qt
    def qw(st, dt): return 32 + 40 * st + 8 + 4 * dt
    def q_reads(ks):
        r = [f"ds_read_b128 {vr(qx(ks,qt),4)}, v{v_ax[ks]} offset:{qt*2048}" for qt in range(2)]
        for dt in range(8):
            for e in range(2): r.append(f"ds_read_b64_tr_b16 {vr(qw(ks,dt)+2*e,2)}, v{v_aw[dt]} offset:{(32*ks+4*e)*256}")
        return r
    def q_set_addr():
        return [f"v_add_u32 v{v_ax[k]}, s{s_rslot}, v{v_bx[k]}" for k in range(2)] + [f"v_add_u32 v{v_aw[k]}, s{s_rslot}, v{v_bw[k]}" for k in range(8)]
    def q_adv(): return [f"s_add_u32 s{s_rslot}, s{s_rslot}, 49152", f"s_cmp_eq_u32 s{s_rslot}, 147456", f"s_cselect_b32 s{s_rslot}, 0, s{s_rslot}"]
    def q_mfmas(st): return [mfma16(QACC + 4 * (8 * qt + dt), qw(st, dt), qx(st, qt)) for dt in range(8) for qt in range(2)]
    def q_interval(vm, extra, first=False):
        A(f"s_waitcnt vmcnt({vm}) lgkmcnt(0)", "s_barrier")
        fill = {}
        spread(fill, q_reads(0), 0, 9)
        h = (len(extra) + 1) // 2
        if extra[:h]: spread(fill, extra[:h], 9, 16)
        if first: A(sum([fill.get(k, []) for k in range(16)], []))
        else: A(interleave(q_mfmas(1), fill))
        A("s_waitcnt lgkmcnt(0)")
        fill = {}
        spread(fill, q_reads(1), 0, 9)
        if extra[h:]: spread(fill, extra[h:], 9, 12)
        fill.setdefault(11, []); fill[11] += q_adv()
        spread(fill, q_set_addr(), 12, 16)
        A(interleave(q_mfmas(0), fill))
    A(f"v_add_u32 v{v_dma}, s{s_wl}, v{v_l16}", f"v_lshlrev_b32 v{v_t0}, 2, v{v_g}", f"v_sub_u32 v{v_dl0}, v{v_n}, v{v_t0}", f"v_mov_b32 v{v_ninf}, 0xff800000")
    A(f"s_lshl_b32 s{s_kB}, s{s_h}, 19",
      f"s_add_u32 s{s_t}, s{s_i}, 1", f"s_lshl_b32 s{s_t}, s{s_t}, 2", f"s_sub_u32 s{s_A0}, s{s_t}, {4 if BAR == 1 else 4}",
      f"s_cmp_eq_u32 s{s_grp}, 0", f"s_cselect_b32 s{s_U1}, s{s_t}, 60", f"s_sub_u32 s{s_U1m}, s{s_U1}, 1",
      f"s_mov_b32 s{s_thr}, {f2u(2.0 ** (tlog2 - BIAS)):#x}")
    A(f"s_lshl_b32 s{s_t}, s{s_i}, 2", f"s_sub_u32 s{s_t}, 30, s{s_t}", f"s_lshl_b32 s{s_dA}, s{s_t}, 13")
    A(f"s_mov_b64 s[{s_spec}:{s_spec+1}], 1",
      f"s_bitset1_b64 s[{s_spec}:{s_spec+1}], s{s_A0}", f"s_bitset1_b64 s[{s_spec}:{s_spec+1}], s{s_U1m}", f"s_bitset1_b64 s[{s_spec}:{s_spec+1}], s{s_U1}")
    if BAR == 1: A(f"s_bitset1_b64 s[{s_spec}:{s_spec+1}], 31")
    A(f"s_lshr_b32 s{s_t}, s{s_row0}, 5", f"s_lshl_b64 s[{s_c}:{s_c+1}], -1, s{s_t}", f"s_lshl_b64 s[{s_c+2}:{s_c+3}], -1, s{s_U1}",
      f"s_andn2_b64 s[{s_c}:{s_c+1}], s[{s_c}:{s_c+1}], s[{s_c+2}:{s_c+3}]", f"s_or_b64 s[{s_spec}:{s_spec+1}], s[{s_spec}:{s_spec+1}], s[{s_c}:{s_c+1}]",
      f"s_add_u32 s{s_t}, s{s_r}, 30", f"s_lshl_b64 s[{s_c}:{s_c+1}], -1, s{s_t}", f"s_and_b64 s[{s_c}:{s_c+1}], s[{s_c}:{s_c+1}], s[{s_c+2}:{s_c+3}]",
      f"s_or_b64 s[{s_spec}:{s_spec+1}], s[{s_spec}:{s_spec+1}], s[{s_c}:{s_c+1}]")
    def kv_srds():
        for (sd, off, size) in ((KB, 0, WS_SIZE - WS_V), (VB, WS_V - 8192, WS_SIZE - WS_V), (KA, 0, 0), (VA, WS_V - 8192, 0)):
            A(f"s_add_u32 s{sd}, s{P_WS}, {off}", f"s_addc_u32 s{sd+1}, s{P_WS+1}, 0", f"s_and_b32 s{sd+1}, s{sd+1}, 0xffff", f"s_mov_b32 s{sd+2}, {size}", f"s_mov_b32 s{sd+3}, 0x20000")
    def kv_dma(stream, pos, k_only=False):
        base = pos * 16384 + (65536 if stream else 0)
        sk = s_kA if stream else s_kB
        sdk, sdv = (KA, VA) if stream else (KB, VB)
        r = [[f"s_add_u32 m0, s{s_wl}, {base}", f"s_add_u32 s{s_kA}, s{s_kB}, s{s_dA}" if not stream else "s_nop 0", f"buffer_load_dwordx4 v{v_dma}, s[{sdk}:{sdk+3}], s{sk} offen lds"]]
        if not k_only: r.append([f"s_add_u32 m0, s{s_wl}, {base+8192}", "s_nop 0", f"buffer_load_dwordx4 v{v_dma}, s[{sdv}:{sdv+3}], s{sk} offen lds"])
        if not stream: r[-1].append(f"s_add_u32 s{s_kB}, s{s_kB}, 8192")
        return r
    kv_srds()
    A(f"s_mov_b32 s{s_rslot}, 0", q_set_addr())
    stamp(A, 1)
    q_interval(16 + 12, [], first=True)
    stamp(A, 2)
    A(f"s_mov_b32 s{s_cnt}, 1")
    A.label("k2_ql")
    q_interval(6, q_dma())
    A(f"s_add_u32 s{s_cnt}, s{s_cnt}, 1", f"s_cmp_lt_u32 s{s_cnt}, 7", "s_cbranch_scc1 k2_ql")
    for k in range(1, 16): A(f"v_add_f32 v{SJ}, v{SJ}, v{SJ+k}")
    A(f"v_cvt_pk_bf16_f32 v{SJ}, v{SJ}, v{SJ}", f"s_lshl_b32 s{s_t}, s2, 10", f"s_lshl_b32 s{s_t2}, s{s_w}, 1", f"s_add_u32 s{s_t}, s{s_t}, s{s_t2}", f"s_add_u32 s{s_t}, s{s_t}, {WS_KVF}")
    A("s_cmp_ge_u32 s2, 160", "s_cbranch_scc1 k2_nosj")
    A(f"buffer_store_short v{SJ}, v{v_l16}, s[{WS}:{WS+3}], s{s_t} offen")
    A.label("k2_nosj")
    q_interval(6, kv_dma(0, 0, k_only=True) + kv_dma(0, 1) + kv_dma(0, 2))
    q_interval(5, kv_dma(0, 3) if BAR == 1 else [])
    A("s_waitcnt lgkmcnt(0)")
    A(q_mfmas(1))
    stamp(A, 3)
    A(f"s_waitcnt vmcnt({2 if BAR == 1 else 4})", "s_barrier")
    for f in range(8): A(f"ds_read_b128 {vr(KF+4*f,4)}, v{v_l16} offset:{f*1024}")
    for r in range(8): A(f"v_mov_b32 v{NM+r}, 0")
    for f in range(8):
        for q in range(4): A(f"v_cvt_pk_bf16_f32 v{Q+4*f+q}, v{QACC+8*f+2*q}, v{QACC+8*f+2*q+1}")
    STASH = 131072
    A(f"s_lshl_b32 s{s_t}, s{s_r}, 13", f"s_add_u32 s{s_t}, s{s_t}, {STASH}", f"v_add_u32 v{v_xa}, s{s_t}, v{v_l16}")
    A(f"s_cmp_eq_u32 s{s_grp}, 0", "s_cbranch_scc1 k2_nostash")
    for f in range(8): A(f"ds_write_b128 v{v_xa}, {vr(Q+4*f,4)} offset:{f*1024}")
    A.label("k2_nostash")
    for r in range(64): A(f"v_mov_b32 v{O+r}, 0")
    for r in range(32): A(f"v_mov_b32 v{VF+r}, 0")
    for r in range(8): A(f"v_mov_b32 v{P+8+r}, 0")
    A(f"v_mov_b32 v{L_}, 0", f"v_mov_b32 v{L_+1}, 0", f"v_mov_b32 v{US}, 0", f"v_mov_b32 v{US+1}, 0")
    def qk_mfmas(par):
        return [mfma16(S + 16 * par + 4 * (2 * qt + kt), KF + 4 * (4 * kt + ds), Q + 4 * (4 * qt + ds), NM + 4 * qt if ds == 0 else None)
                for qt in range(2) for kt in range(2) for ds in range(4)]
    def pv_mfmas(par):
        return [mfma16(O + 4 * (8 * qt + dt), VF + 4 * dt, P + 8 * par + 4 * qt) for dt in range(8) for qt in range(2)]
    A("s_waitcnt lgkmcnt(0)")
    A(qk_mfmas(0))
    A(f"s_mov_b32 s{s_it}, 0", f"v_mov_b32 v{v_kb}, v{v_l16}", f"v_mov_b32 v{v_vb}, v{v_l16}")
    if prio: A(f"s_cmp_eq_u32 s{s_grp}, {prio-1}", "s_cbranch_scc0 k2_noprio", "s_setprio 1", "k2_noprio:")
    stamp(A, 4)
    if asmlib.STAMPS: A("s_mov_b32 s62, 0", "s_mov_b32 s63, 0", "s_mov_b32 s88, 0")

    def sm_ops(par):
        s = S + 16 * par; p = P + 8 * par
        pair = lambda k: [f"v_exp_f32 v{E+(2*k)%8}, v{s+2*k}", f"v_exp_f32 v{E+(2*k+1)%8}, v{s+2*k+1}"]
        def post(k):
            a, b = E + (2 * k) % 8, E + (2 * k + 1) % 8; us = US + k // 4
            r = [f"v_add_f32 v{us}, v{a}, v{b}"] if k % 4 == 0 else [f"v_add_f32 v{us}, v{us}, v{a}", f"v_add_f32 v{us}, v{us}, v{b}"]
            return r + [f"v_cvt_pk_bf16_f32 v{p+k}, v{a}, v{b}"]
        ops = pair(0)
        for k in range(1, 8): ops += pair(k) + post(k - 1)
        return ops + ["s_nop 0"] + post(7)
    def xlane(op, x, t):
        return [f"v_mov_b32 v{t}, v{x}", "s_nop 1", f"v_permlane16_swap_b32 v{x}, v{t}", "s_nop 0", f"{op} v{x}, v{x}, v{t}",
                f"v_mov_b32 v{t}, v{x}", "s_nop 1", f"v_permlane32_swap_b32 v{x}, v{t}", "s_nop 0", f"{op} v{x}, v{x}, v{t}"]
    def rowmax(par, dst, tmp):
        s = S + 16 * par
        r = []
        for qt in range(2):
            b = s + 8 * qt
            r += [f"v_max3_f32 v{dst+qt}, v{b}, v{b+1}, v{b+2}", f"v_max3_f32 v{dst+qt}, v{dst+qt}, v{b+3}, v{b+4}", f"v_max3_f32 v{dst+qt}, v{dst+qt}, v{b+5}, v{b+6}",
                  f"v_max_f32 v{dst+qt}, v{dst+qt}, v{b+7}"]
        for qt in range(2): r += xlane("v_max_f32", dst + qt, tmp)
        return r
    def mask_block(par):
        s = S + 16 * par
        r = ["s_nop 7", f"v_add_u32 v{v_dl}, s{s_rel}, v{v_dl0}"]
        el = [(qt, kt, j) for qt in range(2) for kt in range(2) for j in range(4)]
        for base in range(0, 16, 4):
            for k in range(4):
                qt, kt, j = el[base + k]
                r.append(f"v_cmp_gt_i32 s[{s_c+2*k}:{s_c+2*k+1}], {16*(kt-qt)+j}, v{v_dl}")
            for k in range(4):
                r.append(f"v_cndmask_b32 v{s+base+k}, v{s+base+k}, v{v_ninf}, s[{s_c+2*k}:{s_c+2*k+1}]")
        return r
    def finalize_store(qts, rowreg, inv):
        r = [f"s_lshr_b32 s{s_t}, s{rowreg}, 4", f"s_lshl_b32 s{s_t}, s{s_t}, 5", f"s_add_u32 s{s_t}, s{s_t}, s{s_h}", f"s_lshl_b32 s{s_t}, s{s_t}, 12", f"s_add_u32 s{s_t}, s{s_t}, {WS_CTX}",
             f"s_add_u32 s{s_t2}, s{s_t}, {32*4096}"]
        for qt in qts:
            for ds in range(4):
                b = O + 32 * qt + 8 * ds
                for k in range(8): r.append(f"v_mul_f32 v{b+k}, v{inv[qt]}, v{b+k}")
                for q in range(4): r.append(f"v_cvt_pk_bf16_f32 v{b+q}, v{b+2*q}, v{b+2*q+1}")
                r.append(f"buffer_store_dwordx4 {vr(b,4)}, v{v_l16}, s[{WS}:{WS+3}], s{s_t if qt == 0 else s_t2} offen offset:{ds*1024}")
        return r
    ool = []
    def period(k, kind="loop"):
        par = k & 1; tag = f"{k}{kind}"; pos = (k + 1) & 3
        bar = (BAR == 1) or (par == 0)
        vm = {"loop": 8, "t32": 4, "t33": 0}[kind] if BAR == 1 else 0
        if bar:
            if asmlib.STAMPS:
                A("s_waitcnt lgkmcnt(0)", "s_memtime s[98:99]", "s_waitcnt lgkmcnt(0)", f"s_waitcnt vmcnt({vm})", "s_memtime s[100:101]", "s_waitcnt lgkmcnt(0)",
                  "s_sub_u32 s98, s100, s98", "s_add_u32 s63, s63, s98", "s_barrier", "s_memtime s[98:99]", "s_waitcnt lgkmcnt(0)", "s_sub_u32 s98, s98, s100", "s_add_u32 s88, s88, s98")
            else:
                A(f"s_waitcnt vmcnt({vm}) lgkmcnt(0)", "s_barrier")
        else:
            A("s_waitcnt lgkmcnt(0)")
        A(f"s_bitcmp1_b32 s{s_spec}, {k}", f"s_cbranch_scc1 k2_sp{tag}")
        A.label(f"k2_spret{tag}")
        ool.append([f"k2_sp{tag}:", f"s_add_u32 s{s_u}, s{s_it}, {k}", f"s_call_b64 s[{s_ret}:{s_ret+1}], k2_special{par}", f"s_branch k2_spret{tag}"])
        tail = kind == "t33"
        mf = pv_mfmas(1 - par) + ([] if tail else qk_mfmas(1 - par))
        fill = {}
        fill[0] = [f"v_add_f32 v{L_}, v{L_}, v{US}", f"v_add_f32 v{L_+1}, v{L_+1}, v{US+1}"]
        vreads = [f"ds_read_b128 {vr(VF+4*f,4)}, v{v_vb} offset:{pos*16384 + 8192 + f*1024}" for f in range(8)]
        if not tail:
            spread(fill, [f"ds_read_b128 {vr(KF+4*f,4)}, v{v_kb} offset:{pos*16384 + f*1024}" for f in range(8)], 0, 8)
            fill.setdefault(15, []); fill[15].append("s_waitcnt lgkmcnt(0)")
            spread(fill, vreads, 16, 24)
            spread(fill, sm_ops(par), 1, 29)
            if kind == "loop":
                if BAR == 1:
                    d = kv_dma(0, k) + kv_dma(1, k)
                    for q, sl in enumerate((9, 12, 24, 27)): fill[sl] += d[q]
                elif par == 0:
                    d = kv_dma(0, (k + 3) & 3) + kv_dma(1, (k + 3) & 3) + kv_dma(0, k) + kv_dma(1, k)
                    for q, sl in enumerate((8, 10, 12, 14, 24, 26, 28, 30)): fill.setdefault(sl, []); fill[sl] += d[q]
            fill.setdefault(29, []); fill[29] += [f"v_max_f32 v{v_x0}, v{US}, v{US+1}"]
            fill.setdefault(30, []); fill[30] += [f"v_cmp_nge_f32 vcc, s{s_thr}, v{v_x0}"]
            if k == 3 and kind == "loop":
                fill[29] += [f"s_lshr_b64 s[{s_spec}:{s_spec+1}], s[{s_spec}:{s_spec+1}], 4", f"s_add_u32 s{s_it}, s{s_it}, 4"]
        else:
            spread(fill, sm_ops(par), 1, 16)
            fill[15] += vreads
            fill[15] += [f"v_max_f32 v{v_x0}, v{US}, v{US+1}", "s_nop 0", f"v_cmp_nge_f32 vcc, s{s_thr}, v{v_x0}", "s_nop 1"]
        A(interleave(mf, fill))
        A(f"s_cbranch_vccnz k2_sl{tag}")
        A.label(f"k2_slret{tag}")
        ool.append([f"k2_sl{tag}:", f"s_call_b64 s[{s_ret}:{s_ret+1}], k2_slow{par}", f"s_branch k2_slret{tag}"])
    def slow_path(par):
        sc, sn = S + 16 * par, S + 16 * (1 - par)
        dl_, f_ = [v_x0, v_x1], [v_x2, v_x3]
        r = [f"k2_slow{par}:", "s_nop 15"] + (["s_add_u32 s62, s62, 1"] if asmlib.STAMPS else []) + rowmax(par, v_x0, E)
        for qt in range(2):
            r += [f"v_mov_b32 v{f_[qt]}, v{L_+qt}"] + xlane("v_add_f32", f_[qt], E) + [f"v_log_f32 v{f_[qt]}, v{f_[qt]}", "s_nop 0",
                  f"v_max_f32 v{dl_[qt]}, v{dl_[qt]}, v{f_[qt]}", f"v_add_f32 v{dl_[qt]}, {f2u(BIAS):#x}, v{dl_[qt]}", f"v_max_f32 v{dl_[qt]}, 0, v{dl_[qt]}",
                  f"v_sub_f32 v{f_[qt]}, 0, v{dl_[qt]}", f"v_exp_f32 v{f_[qt]}, v{f_[qt]}"]
        for qt in range(2):
            for k in range(4): r.append(f"v_sub_f32 v{NM+4*qt+k}, v{NM+4*qt+k}, v{dl_[qt]}")
            for k in range(8): r += [f"v_sub_f32 v{sc+8*qt+k}, v{sc+8*qt+k}, v{dl_[qt]}", f"v_sub_f32 v{sn+8*qt+k}, v{sn+8*qt+k}, v{dl_[qt]}"]
            r.append(f"v_mul_f32 v{L_+qt}, v{f_[qt]}, v{L_+qt}")
            for k in range(32): r.append(f"v_mul_f32 v{O+32*qt+k}, v{f_[qt]}, v{O+32*qt+k}")
        return r + sm_ops(par) + [f"s_setpc_b64 s[{s_ret}:{s_ret+1}]"]
    A.label("k2_loop")
    for k in range(4): period(k)
    A(f"s_cmp_lt_u32 s{s_it}, 32", "s_cbranch_scc1 k2_loop")
    period(0, "t32")
    period(1, "t33")
    A(f"v_add_f32 v{L_}, v{L_}, v{US}", f"v_add_f32 v{L_+1}, v{L_+1}, v{US+1}")
    A("s_waitcnt lgkmcnt(0)")
    A(pv_mfmas(1))
    stamp(A, 5)
    for qt in range(2): A(xlane("v_add_f32", L_ + qt, E))
    A(f"v_mov_b32 v{E}, v{NM}", f"v_mov_b32 v{E+1}, v{NM+4}", f"v_mov_b32 v{E+2}, v{L_}", f"v_mov_b32 v{E+3}, v{L_+1}")
    A(f"s_add_u32 s{s_t}, s{s_wl}, {STASH}", f"v_add_u32 v{v_t0}, s{s_t}, v{v_l16}", f"ds_write_b128 v{v_t0}, {vr(E,4)}",
      f"s_xor_b32 s{s_t}, s{s_t}, 4096", f"v_add_u32 v{v_t0}, s{s_t}, v{v_l16}",
      f"s_lshl_b32 s{s_t}, s{s_r}, 13", f"s_lshl_b32 s{s_t2}, s{s_grp}, 16", f"s_add_u32 s{s_t}, s{s_t}, s{s_t2}", f"v_add_u32 v{v_t1}, s{s_t}, v{v_l16}",
      f"s_xor_b32 s{s_t}, s{s_t}, 65536", f"v_add_u32 v{v_t2}, s{s_t}, v{v_l16}")
    A(f"s_cmp_eq_u32 s{s_grp}, 1", "s_cbranch_scc1 k2_mergeB")
    for grp in range(2):
        keep, send = grp, 1 - grp
        if grp == 1: A.label("k2_mergeB")
        for k in range(8): A(f"ds_write_b128 v{v_t1}, {vr(O+32*send+4*k,4)} offset:{k*1024}")
        A("s_waitcnt lgkmcnt(0)", "s_barrier")
        A(f"ds_read_b128 {vr(E+4,4)}, v{v_t0}")
        for k in range(8): A(f"ds_read_b128 {vr(KF+4*k,4)}, v{v_t2} offset:{k*1024}")
        A("s_waitcnt lgkmcnt(8)")
        no, lo, np_, lp = E + keep, E + 2 + keep, E + 4 + keep, E + 6 + keep
        A(f"v_min_f32 v{v_x0}, v{no}, v{np_}", f"v_sub_f32 v{v_x1}, v{v_x0}, v{no}", f"v_sub_f32 v{v_x2}, v{v_x0}, v{np_}",
          f"v_exp_f32 v{v_x1}, v{v_x1}", f"v_exp_f32 v{v_x2}, v{v_x2}", "s_nop 0",
          f"v_mul_f32 v{v_x0}, v{v_x1}, v{lo}", f"v_fmac_f32 v{v_x0}, v{v_x2}, v{lp}", f"v_rcp_f32 v{v_x0}, v{v_x0}", "s_nop 0",
          f"v_mul_f32 v{v_x0}, {f2u(2.0**-VSCALE_LOG2):#x}, v{v_x0}",
          "s_waitcnt lgkmcnt(0)")
        for k in range(32):
            A(f"v_mul_f32 v{O+32*keep+k}, v{v_x1}, v{O+32*keep+k}", f"v_fmac_f32 v{O+32*keep+k}, v{v_x2}, v{KF+k}")
        A(finalize_store([keep], s_rowL, [v_x0, v_x0]))
        if grp == 0: A("s_branch k2_done")
    A.label("k2_done")
    stamp(A, 6)
    if asmlib.STAMPS: A(f"v_writelane_b32 v{asmlib.STAMP_V}, s62, 40", f"v_writelane_b32 v{asmlib.STAMP_V}, s63, 41", f"v_writelane_b32 v{asmlib.STAMP_V}, s88, 42")
    stamp_flush(A, WS, s_w, 8, 1, vtmp=v_t0)
    A("s_endpgm")
    for b in ool: A(b)
    for par in range(2): A(slow_path(par))
    ret = f"s_setpc_b64 s[{s_ret}:{s_ret+1}]"
    for par in range(2):
        A.label(f"k2_special{par}")
        A(f"s_lshr_b32 s{s_t}, s{s_dA}, 8", f"s_sub_u32 s{s_t}, s{s_rowL}, s{s_t}", f"s_cmp_lt_u32 s{s_u}, s{s_U1}", f"s_cselect_b32 s{s_t}, s{s_row0}, s{s_t}",
          f"s_lshl_b32 s{s_t2}, s{s_u}, 5", f"s_sub_u32 s{s_rel}, s{s_t}, s{s_t2}", f"s_cmp_ge_i32 s{s_rel}, 31", f"s_cbranch_scc1 k2_nomask{par}")
        A(mask_block(par))
        A.label(f"k2_nomask{par}")
        if par == 1:
            if BAR == 1:
                A(f"s_cmp_lg_u32 s{s_u}, 31", "s_cbranch_scc1 k2_no31",
                  f"s_mov_b32 s{KB+2}, 0", f"s_mov_b32 s{VB+2}, 0", f"s_mov_b32 s{KA+2}, 0", f"s_mov_b32 s{VA+2}, 0", "k2_no31:")
            A(f"s_cmp_lg_u32 s{s_u}, s{s_U1m}", "s_cbranch_scc1 k2_nox1")
            for f in range(8): A(f"ds_read_b128 {vr(Q+4*f,4)}, v{v_xa} offset:{f*1024}")
            A(f"v_add_u32 v{v_kb}, 65536, v{v_l16}")
            A.label("k2_nox1")
            A(ret)
        else:
            A(f"s_cmp_lg_u32 s{s_u}, s{s_A0}", "s_cbranch_scc1 k2_noa0", f"s_mov_b32 s{KA+2}, {WS_SIZE - WS_V}", f"s_mov_b32 s{VA+2}, {WS_SIZE - WS_V}", "k2_noa0:")
            A(f"s_cmp_eq_u32 s{s_u}, 0", "s_cbranch_scc1 k2_fresh", f"s_cmp_lg_u32 s{s_u}, s{s_U1}", "s_cbranch_scc1 k2_nox2")
            A(pv_mfmas(1))
            A(f"v_add_u32 v{v_vb}, 65536, v{v_l16}")
            A(f"v_add_f32 v{L_}, v{L_}, v{US}", f"v_add_f32 v{L_+1}, v{L_+1}, v{US+1}")
            for qt in range(2):
                A(xlane("v_add_f32", L_ + qt, E), f"v_rcp_f32 v{L_+qt}, v{L_+qt}", "s_nop 0", f"v_mul_f32 v{L_+qt}, {f2u(2.0**-VSCALE_LOG2):#x}, v{L_+qt}")
            A(finalize_store([0, 1], s_row0, [L_, L_ + 1]))
            A("s_nop 1")
            for r in range(64): A(f"v_mov_b32 v{O+r}, 0")
            for r in range(8): A(f"v_mov_b32 v{P+8+r}, 0")
            A(f"v_mov_b32 v{L_}, 0", f"v_mov_b32 v{L_+1}, 0", f"v_mov_b32 v{US}, 0", f"v_mov_b32 v{US+1}, 0")
            A.label("k2_fresh")
            A("s_nop 7", rowmax(0, v_x0, E))
            for qt in range(2):
                d = v_x0 + qt
                A(f"v_max_f32 v{d}, {f2u(-1e30):#x}, v{d}", f"v_add_f32 v{d}, {f2u(BIAS):#x}, v{d}")
                for k in range(4): A(f"v_sub_f32 v{NM+4*qt+k}, v{NM+4*qt+k}, v{d}")
                for k in range(8): A(f"v_sub_f32 v{S+8*qt+k}, v{S+8*qt+k}, v{d}")
            A.label("k2_nox2")
            A(ret)
    A.label("k2_end")
    A("s_endpgm")
    return name
```

```python
from common import *
import asmlib
LDS = 73728
ACCUM = 256
NVGPR = 256 + 208

def ar(a, n=1): return f"a{a}" if n == 1 else f"a[{a}:{a+n-1}]"
def mfma32a(d, a, b, c=None):
    cs = ar(d, 16) if c is None else c
    return f"v_mfma_f32_32x32x16_bf16 {ar(d,16)}, {vr(a,4)}, {vr(b,4)}, {cs}"

def gen_k3(A):
    name = "k3_kernel"
    A(f".globl {name}", ".p2align 8", f".type {name},@function")
    A.label(name)
    asmlib.STAMP_V = 15
    OUT = D0
    s_x, s_j, s_rp, s_cb, s_c, s_wo = 35, 36, 37, 38, 39, 40
    A("s_cmp_ge_u32 s2, 256", "s_cbranch_scc1 k3_end")
    stamp(A, 0)
    A("s_load_dwordx2 s[84:85], s[0:1], 80", "s_load_dwordx2 s[88:89], s[0:1], 96")
    code_prefetch(A, "k3_kernel", "code_end", v_t0, 14, 256)
    A(f"v_lshrrev_b32 v{v_t0}, 6, v0", f"v_and_b32 v{v_l}, 63, v0", f"v_readfirstlane_b32 s{s_w}, v{v_t0}")
    A(f"v_and_b32 v{v_n}, 15, v{v_l}", f"v_lshrrev_b32 v{v_g}, 4, v{v_l}", f"v_lshlrev_b32 v{v_l16}, 4, v{v_l}")
    A(f"s_and_b32 s{s_x}, s2, 7", f"s_lshr_b32 s{s_j}, s2, 3")
    A("s_waitcnt lgkmcnt(0)")
    srd(A, WS, P_WS, WS_SIZE); srd(A, OUT, P_OUT, SZ_OUT)
    A(f"s_cmp_ge_u32 s{s_j}, 24", "s_cbranch_scc1 k3_B")
    v_c = [9, 10, 11, 12]; v_w2 = 13
    A(f"s_mul_i32 s{s_t}, s{s_j}, 43", f"s_lshr_b32 s{s_t}, s{s_t}, 8", f"s_mul_i32 s{s_t2}, s{s_t}, 6", f"s_sub_u32 s{s_cb}, s{s_j}, s{s_t2}",
      f"s_lshl_b32 s{s_rp}, s{s_x}, 2", f"s_add_u32 s{s_rp}, s{s_rp}, s{s_t}")
    for a in range(4):
        A(f"s_add_u32 s{s_t}, s{s_w}, {a}", f"s_and_b32 s{s_t}, s{s_t}, 3", f"s_lshl_b32 s{s_t}, s{s_t}, 17", f"v_add_u32 v{v_c[a]}, s{s_t}, v{v_l16}")
    A(f"v_add_u32 v{v_w2}, 4096, v{v_l16}")
    A(f"s_lshl_b32 s{s_c}, s{s_rp}, 19", f"s_lshl_b32 s{s_t}, s{s_w}, 15", f"s_add_u32 s{s_c}, s{s_c}, s{s_t}", f"s_add_u32 s{s_c}, s{s_c}, {WS_CTX}",
      f"s_mul_i32 s{s_wo}, s{s_cb}, 786432", f"s_mul_i32 s{s_t}, s{s_w}, {32*6144}", f"s_add_u32 s{s_wo}, s{s_wo}, s{s_t}", f"s_add_u32 s{s_wo}, s{s_wo}, {WS_WO}")
    DEP = 6
    def fr(t, k): return 16 + 40 * (t % DEP) + 4 * k
    def loads(t):
        r = []
        for c6 in range(6):
            r.append(f"buffer_load_dwordx4 {vr(fr(t,4+c6),4)}, v{v_l16 if c6 < 4 else v_w2}, s[{WS}:{WS+3}], s{s_wo} offen offset:{(c6%4)*1024}")
            if c6 < 4: r.append(f"buffer_load_dwordx4 {vr(fr(t,c6),4)}, v{v_c[c6]}, s[{WS}:{WS+3}], s{s_c} offen")
        r[-1] = [r[-1], f"s_add_u32 s{s_wo}, s{s_wo}, 6144", f"s_add_u32 s{s_c}, s{s_c}, 1024"]
        return r
    for t in range(DEP - 1): A(loads(t))
    stamp(A, 1)
    for t in range(32):
        newer = min(DEP - 2, 31 - t) * 10
        A(f"s_waitcnt vmcnt({newer})")
        mf = [mfma16(4 * (6 * a + c6), fr(t, 4 + c6), fr(t, a), "0" if t == 0 else None, dpre="a") for a in range(4) for c6 in range(6)]
        fill = {}
        if t + DEP - 1 < 32: spread(fill, loads(t + DEP - 1), 0, 20)
        A(interleave(mf, fill))
    stamp(A, 2)
    A("s_nop 7")
    for ap in range(1, 4):
        A(f"s_add_u32 s{s_t}, s{s_w}, {ap}", f"s_and_b32 s{s_t}, s{s_t}, 3", f"s_mul_i32 s{s_t}, s{s_t}, {18*1024}", f"v_add_u32 v{v_t0}, s{s_t}, v{v_l16}")
        for c6 in range(6): A(f"ds_write_b128 v{v_t0}, {ar(4*(6*ap+c6),4)} offset:{((ap-1)*6+c6)*1024}")
    for k in range(24): A(f"v_accvgpr_read_b32 v{16+k}, a{k}")
    A(f"s_mul_i32 s{s_t}, s{s_w}, {18*1024}", f"v_add_u32 v{v_t0}, s{s_t}, v{v_l16}")
    A("s_waitcnt lgkmcnt(0)", "s_barrier")
    for k in range(18): A(f"ds_read_b128 {vr(40+4*k,4)}, v{v_t0} offset:{k*1024}")
    A(f"s_lshl_b32 s{s_t}, s{s_rp}, 6", f"s_lshl_b32 s{s_t2}, s{s_w}, 4", f"s_add_u32 s{s_t}, s{s_t}, s{s_t2}", f"v_add_u32 v{v_t1}, s{s_t}, v{v_n}", f"v_mul_u32_u24 v{v_t1}, 2304, v{v_t1}",
      f"v_lshl_add_u32 v{v_t1}, v{v_g}, 3, v{v_t1}", f"s_mul_i32 s{s_t}, s{s_cb}, 192")
    for sl in range(3):
        A(f"s_waitcnt lgkmcnt({12 - 6*sl})")
        for k in range(24): A(f"v_add_f32 v{16+k}, v{16+k}, v{40+24*sl+k}")
    for c6 in range(6):
        b = 16 + 4 * c6
        A(f"v_cvt_pk_bf16_f32 v{b}, v{b}, v{b+1}", f"v_cvt_pk_bf16_f32 v{b+1}, v{b+2}, v{b+3}",
          f"buffer_store_dwordx2 {vr(b,2)}, v{v_t1}, s[{OUT}:{OUT+3}], s{s_t} offen offset:{c6*32}")
    stamp(A, 3)
    stamp_flush(A, WS, s_w, 4, 2, vtmp=v_t0)
    A("s_endpgm")
    A.label("k3_B")
    s_rt = s_rp
    v_m, v_hf = 9, 10
    A(f"v_and_b32 v{v_m}, 31, v{v_l}", f"v_lshrrev_b32 v{v_hf}, 5, v{v_l}")
    A(f"s_lshl_b32 s{s_rt}, s{s_x}, 3", f"s_add_u32 s{s_rt}, s{s_rt}, s{s_j}", f"s_sub_u32 s{s_rt}, s{s_rt}, 24")
    PH, KV = 16, 96
    A(f"s_lshl_b32 s{s_t}, s{s_rt}, 4", f"s_lshl_b32 s{s_t2}, s{s_w}, 2", f"s_add_u32 s{s_t}, s{s_t}, s{s_t2}", f"s_mul_i32 s{s_c}, s{s_t}, 5120", f"s_add_u32 s{s_c}, s{s_c}, {WS_PHIQ}",
      f"s_mul_i32 s{s_wo}, s{s_w}, 40960", f"s_add_u32 s{s_wo}, s{s_wo}, {WS_KVF}")
    for pl in range(4):
        for f in range(5):
            k = 5 * pl + f
            A(f"buffer_load_dwordx4 {vr(PH+4*k,4)}, v{v_l16}, s[{WS}:{WS+3}], s{s_c} offen offset:{(k%4)*1024}")
            if k % 4 == 3: A(f"s_add_u32 s{s_c}, s{s_c}, 4096")
        for f in range(10):
            k = 10 * pl + f
            A(f"buffer_load_dwordx4 {vr(KV+4*k,4)}, v{v_l16}, s[{WS}:{WS+3}], s{s_wo} offen offset:{(k%4)*1024}")
            if k % 4 == 3: A(f"s_add_u32 s{s_wo}, s{s_wo}, 4096")
    v_wb = [11, 12, 13, v_t2, v_t3]
    for c in range(5):
        A(f"s_add_u32 s{s_t}, s{s_w}, {4*c}", f"s_lshl_b32 s{s_t}, s{s_t}, 10")
        if c == 4: A(f"s_cmp_lt_u32 s{s_w}, 2", f"s_cselect_b32 s{s_t}, s{s_t}, 0x7fff0000")
        A(f"v_add_u32 v{v_wb[c]}, s{s_t}, v{v_l16}")
    for pl in range(4):
        A(f"s_waitcnt vmcnt({15*(3-pl)})")
        for mt in range(2):
            for ks in range(5):
                A(mfma32a(32 * pl + 16 * mt, KV + 4 * (10 * pl + 5 * mt + ks), PH + 4 * (5 * pl + ks), "0" if ks == 0 else None))
    BD = 10
    def wb(ks, c): return 56 + 20 * (ks % BD) + 4 * c
    A(f"s_mov_b32 s{s_wo}, {WS_WOB}")
    def wloads(ks):
        r = [f"buffer_load_dwordx4 {vr(wb(ks,c),4)}, v{v_wb[c]}, s[{WS}:{WS+3}], s{s_wo} offen" for c in range(5)]
        r[-1] = [r[-1], f"s_add_u32 s{s_wo}, s{s_wo}, {18*1024}"]
        return r
    A("s_nop 7")
    for ks in range(BD - 1): A(wloads(ks))
    for pl in range(4):
        d0 = 32 * pl
        A(f"v_accvgpr_read_b32 v52, a{d0+18}", "s_nop 0", f"v_add_f32 v52, {f2u(1e-6):#x}, v52", "v_rcp_f32 v52, v52")
        for q in range(9):
            A(f"v_accvgpr_read_b32 v53, a{d0+2*q}", f"v_accvgpr_read_b32 v54, a{d0+2*q+1}", "v_mul_f32 v53, v52, v53", "v_mul_f32 v54, v52, v54",
              f"v_cvt_pk_bf16_f32 v{16+9*pl+q}, v53, v54")
    A(f"s_mul_i32 s{s_t}, s{s_w}, 9216", f"v_add_u32 v{v_t0}, s{s_t}, v{v_l16}")
    for k in range(9): A(f"ds_write_b128 v{v_t0}, {vr(16+4*k,4)} offset:{k*1024}")
    A("s_waitcnt lgkmcnt(0)", "s_barrier")
    def of(ks): return 16 + 4 * (ks % 8)
    for ks in range(6): A(f"ds_read_b128 {vr(of(ks),4)}, v{v_l16} offset:{ks*1024}")
    for ks in range(36):
        newer = min(BD - 2, 35 - ks) * 5
        A(f"s_waitcnt vmcnt({newer}) lgkmcnt({min(5, 35-ks)})")
        mf = [mfma32a(128 + 16 * c, wb(ks, c), of(ks), "0" if ks == 0 else None) for c in range(5)]
        fill = {}
        if ks + BD - 1 < 36: spread(fill, wloads(ks + BD - 1), 0, 5)
        if ks + 6 < 36: fill.setdefault(0, []); fill[0].append(f"ds_read_b128 {vr(of(ks+6),4)}, v{v_l16} offset:{(ks+6)*1024}")
        A(interleave(mf, fill))
    A(f"s_lshl_b32 s{s_t}, s{s_rt}, 5", f"v_add_u32 v{v_t1}, s{s_t}, v{v_m}", f"v_mul_u32_u24 v{v_t1}, 2304, v{v_t1}", f"v_lshl_add_u32 v{v_t1}, v{v_hf}, 3, v{v_t1}",
      f"s_lshl_b32 s{s_t}, s{s_w}, 6", f"s_add_u32 s{s_t}, s{s_t}, 1152", "s_nop 7")
    for c in range(5):
        if c == 4: A(f"s_cmp_ge_u32 s{s_w}, 2", "s_cbranch_scc1 k3_done")
        for q in range(4):
            b = 56 + 4 * (4 * c + q)
            for k in range(4): A(f"v_accvgpr_read_b32 v{b+k}, a{128+16*c+4*q+k}")
            A(f"v_cvt_pk_bf16_f32 v{b}, v{b}, v{b+1}", f"v_cvt_pk_bf16_f32 v{b+1}, v{b+2}, v{b+3}",
              f"buffer_store_dwordx2 {vr(b,2)}, v{v_t1}, s[{OUT}:{OUT+3}], s{s_t} offen offset:{c*256 + q*16}")
    A.label("k3_done")
    stamp(A, 3)
    stamp_flush(A, WS, s_w, 4, 2, vtmp=v_t0)
    A.label("k3_end")
    A("s_endpgm")
    return name
```

```python
MB = 1 << 20
WS_K = 0
WS_V = 16 * MB
WS_CTX = 32 * MB
WS_WO = 48 * MB
WS_PHIQ = 54 * MB
WS_KVP = 60 * MB
WS_KVF = 62 * MB
WS_WOB = 63 * MB
WS_QL = 64 * MB
WS_SIZE = 256 * MB
SZ_X = 2048 * 576 * 2
SZ_C = 2048 * 512 * 2
SZ_WQ = 576 * 4096 * 2
SZ_WU = 512 * 4096 * 2
SZ_WO = 4096 * 576 * 2
SZ_WQKV = 576 * 1728 * 2
SZ_WPHI = 32 * 18 * 18 * 2
SZ_WOB = 576 * 576 * 2
SZ_OUT = 2048 * 1152 * 2
P_AX, P_C, P_WQ, P_WUK, P_WUV, P_WO, P_BX, P_WQKV, P_WPHI, P_WOB, P_OUT, P_DBG, P_WS = [64 + 2 * i for i in range(13)]
def load_ptrs(A):
    A("s_load_dwordx16 s[64:79], s[0:1], 0", "s_load_dwordx8 s[80:87], s[0:1], 64", "s_load_dwordx2 s[88:89], s[0:1], 96")
```

```python
import sys
from asmlib import *
import k1
NAME = "concat_heads__compressed_kv_cla__linear_kernel_hedgehog__prompt"
HEAD = open("cdna_kernels/%s.s.ref" % NAME).read().split("; Override launch geometry")[0]
def build(kernels=("k1", "k2", "k3"), **opt):
    A = Asm()
    launches = []; descs = []
    if "k1" in kernels:
        n = k1.gen_k1(A); launches.append((n, 256, 512, 163840)); descs.append(kernel_desc(n, 256))
    if "k2" in kernels:
        import k2
        n = k2.gen_k2(A, **opt); launches.append((n, 256, 512, 163840)); descs.append(kernel_desc(n, 256))
    if "k3" in kernels:
        import k3
        n = k3.gen_k3(A); launches.append((n, 256, 256, k3.LDS)); descs.append(kernel_desc(n, k3.NVGPR, accum=k3.ACCUM))
    A.label("code_end")
    A("s_nop 0")
    s = HEAD
    for n, g, b, l in launches:
        s += f"; @launch kernel={n} grid=({g},1,1) block=({b},1,1) lds={l}\n"
    s += '.amdgcn_target "amdgcn-amd-amdhsa--gfx950"\n.text\n' + A.text()
    s += '.section .rodata,"a"\n'
    for d in descs: s += ".p2align 6\n" + d
    return s
if __name__ == "__main__":
    ks = sys.argv[2].split(",") if len(sys.argv) > 2 else ("k1", "k2", "k3")
    import asmlib, os
    asmlib.STAMPS = bool(os.environ.get("STAMPS"))
    out = sys.argv[1] if len(sys.argv) > 1 else "cdna_kernels/%s.s" % NAME
    opt = eval("dict(%s)" % os.environ.get("K2OPT", ""))
    open(out, "w").write(build(ks, **opt))
    print("wrote", out)
```
